```python
import torch

def _softmax(x, axis=-1):
    return torch.softmax(x, dim=axis)
def _gelu(x):
    return torch.nn.functional.gelu(x, approximate="tanh")
def _silu(x):
    return torch.nn.functional.silu(x)
def _sigmoid(x):
    return torch.sigmoid(x)
def _layernorm(x, axis=-1, eps=1e-5):
    m = x.mean(dim=axis, keepdim=True)
    v = x.var(dim=axis, keepdim=True, unbiased=False)
    return (x - m) / torch.sqrt(v + eps)
def _scatter_add(tgt, idx, src, axis=0):
    return tgt.clone().index_add_(axis, idx, src)
def _segment_sum(src, seg, n):
    out = torch.zeros((n,) + src.shape[1:], dtype=src.dtype)
    return out.index_add_(0, seg, src)
def _pad(x, pw):
    flat = tuple(v for pair in reversed(pw) for v in pair)
    return torch.nn.functional.pad(x, flat)

kernel_name = 'gated_mix__mha_block_cached__sliding_block_cached__decode'

def setup_inputs():

    _w = (lambda a: (lambda t: t.to(torch.bfloat16) if t.is_floating_point() else t)(torch.as_tensor(a)))
    def _A_setup():
        B, Sq, D = 4, 1, 512
        H, Sk, Dh = 32, 8192, 128
        return {
            "x": _w((lambda *s: torch.randn(*s, dtype=torch.bfloat16) * 0.05)(B, Sq, D)),
            "k_cache": _w((lambda *s: torch.randn(*s, dtype=torch.bfloat16) * 6.4)(B, H, Sk, Dh)),
            "v_cache": _w((lambda *s: torch.randn(*s, dtype=torch.bfloat16) * 0.05)(B, H, Sk, Dh)),
            "wq": _w((lambda *s: torch.randn(*s, dtype=torch.bfloat16) * 6.4)(D, H * Dh) * (D ** -0.5)),
            "wo": _w((lambda *s: torch.randn(*s, dtype=torch.bfloat16) * 0.05)(H * Dh, D) * ((H * Dh) ** -0.5)),
        }
    _A_in = _A_setup()

    def _B_setup():
        B, Sq, D = 4, 1, 512
        Hq, Hkv, Sk, Dh = 32, 8, 8192, 128
        assert Hq % Hkv == 0, (Hq, Hkv)
        return {
            "x": _w((lambda *s: torch.randn(*s, dtype=torch.bfloat16) * 0.05)(B, Sq, D)),
            "k_cache": _w((lambda *s: torch.randn(*s, dtype=torch.bfloat16) * 6.4)(B, Hkv, Sk, Dh)),
            "v_cache": _w((lambda *s: torch.randn(*s, dtype=torch.bfloat16) * 0.05)(B, Hkv, Sk, Dh)),
            "wq": _w((lambda *s: torch.randn(*s, dtype=torch.bfloat16) * 6.4)(D, Hq * Dh) * (D ** -0.5)),
            "wo": _w((lambda *s: torch.randn(*s, dtype=torch.bfloat16) * 0.05)(Hq * Dh, D) * ((Hq * Dh) ** -0.5)),
        }
    _B_in = _B_setup()

    return {
        "A_x": _A_in["x"],
        "A_k_cache": _A_in["k_cache"],
        "A_v_cache": _A_in["v_cache"],
        "A_wq": _A_in["wq"],
        "A_wo": _A_in["wo"],
        "B_x": _B_in["x"],
        "B_k_cache": _B_in["k_cache"],
        "B_v_cache": _B_in["v_cache"],
        "B_wq": _B_in["wq"],
        "B_wo": _B_in["wo"],
        "gate_w": _w((lambda *s: torch.randn(*s, dtype=torch.bfloat16) * 0.05)(512) * 16.0),
    }

def reference(A_x, A_k_cache, A_v_cache, A_wq, A_wo, B_x, B_k_cache, B_v_cache, B_wq, B_wo, gate_w):
    def _A_ref(x, k_cache, v_cache, wq, wo):
        B, Sq, D = x.shape
        H, Dh = 32, 128
        q = (lambda x, *d: x.permute(*d))((x @ wq).reshape(B, Sq, H, Dh), 0, 2, 1, 3)
        scores = torch.einsum("bhqd,bhkd->bhqk", q, k_cache) * (Dh ** -0.5)
        p = _softmax(scores, axis=-1)
        o = torch.einsum("bhqk,bhkd->bhqd", p, v_cache)
        return (lambda x, *d: x.permute(*d))(o, 0, 2, 1, 3).reshape(B, Sq, H * Dh) @ wo

    def _B_ref(x, k_cache, v_cache, wq, wo):
        B, Sq, D = x.shape
        Hq, Dh = 32, 128
        Hkv, Sk = k_cache.shape[1], k_cache.shape[2]
        W = min(4096, max(256, Sk // 4))
        rep = Hq // Hkv
        q = (lambda x, *d: x.permute(*d))((x @ wq).reshape(B, Sq, Hq, Dh), 0, 2, 1, 3)
        k = (lambda x, n, axis: torch.repeat_interleave(x, n, dim=axis))(k_cache[:, :, Sk - W:, :], rep, axis=1)
        v = (lambda x, n, axis: torch.repeat_interleave(x, n, dim=axis))(v_cache[:, :, Sk - W:, :], rep, axis=1)
        scores = torch.einsum("bhqd,bhkd->bhqk", q, k) * (Dh ** -0.5)
        p = _softmax(scores, axis=-1)
        o = torch.einsum("bhqk,bhkd->bhqd", p, v)
        return (lambda x, *d: x.permute(*d))(o, 0, 2, 1, 3).reshape(B, Sq, Hq * Dh) @ wo

    x = A_x
    g = _sigmoid((x * gate_w).sum(-1, keepdims=True))
    a = _A_ref(x, A_k_cache, A_v_cache, A_wq, A_wo)
    b = _B_ref(x, B_k_cache, B_v_cache, B_wq, B_wo)
    return g * a + (1 - g) * b
```

```python
import re

TRANS = ("v_exp_f32", "v_log_f32", "v_rcp_f32", "v_rsq_f32", "v_sqrt_f32", "v_sin_f32", "v_cos_f32")

def _regs(tok):
    tok = tok.strip()
    tok = tok.lstrip("-")
    m = re.match(r"^abs\((.*)\)$", tok)
    if m: tok = m.group(1)
    tok = tok.strip("|")
    m = re.match(r"^([vsa])(\d+)$", tok)
    if m: return [(m.group(1), int(m.group(2)))]
    m = re.match(r"^([vsa])\[(\d+):(\d+)\]$", tok)
    if m: return [(m.group(1), i) for i in range(int(m.group(2)), int(m.group(3)) + 1)]
    if tok == "vcc": return [("s", "vcc_lo"), ("s", "vcc_hi")]
    if tok in ("vcc_lo", "vcc_hi"): return [("s", tok)]
    if tok == "exec": return [("s", "exec_lo"), ("s", "exec_hi")]
    if tok in ("exec_lo", "exec_hi"): return [("s", tok)]
    if tok == "m0": return [("s", "m0")]
    return []

class Ins:
    __slots__ = ("text", "op", "kind", "w", "r", "states", "srcc", "srcab", "dpp", "storedata", "wide")

class Asm:
    def __init__(self):
        self.lines = []
        self.hist = []
        self.nlabel = 0
        self.maxv = 0
        self.maxs = 0

    def raw(self, s):
        self.lines.append(s)

    def comment(self, s):
        self.lines.append("; " + s)

    def label(self, name, safe=False):
        self.lines.append(name + ":")

    def newlabel(self, base="L"):
        self.nlabel += 1
        return f"{base}_{self.nlabel}"

    def settle(self, n=8):
        need = 0
        acc = 0
        for ins in reversed(self.hist):
            if acc >= 8: break
            if ins.kind == "mfma": need = max(need, 8 - acc)
            elif ins.kind in ("valu", "trans", "dpp", "perm"):
                need = max(need, (5 if any(k == "s" for k, _ in ins.w) else 2) - acc)
            elif ins.kind == "vmem" and ins.wide: need = max(need, 2 - acc)
            acc += ins.states
        if need > 0: self.nop(need)

    def nop(self, n):
        while n > 0:
            k = min(n, 16)
            self._push(f"s_nop {k-1}", "s_nop", "salu", [], [], states=k)
            n -= k

    def _push(self, text, op, kind, w, r, states=1, **kw):
        i = Ins(); i.text = text; i.op = op; i.kind = kind; i.w = set(w); i.r = set(r); i.states = states
        i.srcc = kw.get("srcc"); i.srcab = kw.get("srcab"); i.dpp = kw.get("dpp", False)
        i.storedata = kw.get("storedata"); i.wide = kw.get("wide", False)
        self.hist.append(i)
        if len(self.hist) > 64: self.hist = self.hist[-40:]
        self.lines.append("    " + text)
        for k, n in list(w) + list(r):
            if isinstance(n, int):
                if k in "va": self.maxv = max(self.maxv, n + 1)
                if k == "s": self.maxs = max(self.maxs, n + 1)

    def __call__(self, text):
        text = text.strip()
        if ";" in text: body = text.split(";")[0].strip()
        else: body = text
        qp = "quad_perm" in body
        body = re.sub(r"quad_perm:\[[^\]]*\]", "quad_perm", body)
        body = re.sub(r"op_sel(_hi)?:\[[^\]]*\]", "op_sel", body)
        sp = body.split(None, 1)
        op = sp[0]
        rest = sp[1] if len(sp) > 1 else ""
        parts = [p.strip() for p in rest.split(",")] if rest else []
        mods = ""
        if parts:
            lp = parts[-1].split(None, 1)
            parts[-1] = lp[0]
            mods = lp[1] if len(lp) > 1 else ""
        ops = [_regs(p) for p in parts]
        w, r = [], []
        kw = {}
        opn = re.sub(r"_(e32|e64|dpp|sdwa)$", "", op)
        isdpp = op.endswith("_dpp") or any(x in mods for x in ("row_", "quad_perm", "wave_", "row_newbcast"))
        if op == "s_nop":
            self._push(text, op, "salu", [], [], states=int(parts[0], 0) + 1); return
        if op.startswith("v_mfma"):
            kind = "mfma"; w = ops[0]; r = ops[1] + ops[2] + ops[3]
            kw["srcc"] = ops[3]; kw["srcab"] = set(ops[1] + ops[2])
        elif op.startswith("v_permlane"):
            kind = "perm"; w = ops[0] + ops[1]; r = ops[0] + ops[1]
        elif opn in ("v_readfirstlane_b32", "v_readlane_b32"):
            kind = "rdlane"; w = ops[0]; r = sum(ops[1:], [])
        elif op.startswith("v_cmpx"):
            kind = "valu"; w = ops[0] + _regs("exec"); r = sum(ops[1:], [])
        elif op.startswith("v_cmp"):
            kind = "valu"; w = ops[0]; r = sum(ops[1:], [])
        elif op.startswith("v_"):
            kind = "trans" if opn in TRANS else ("dpp" if isdpp else "valu")
            w = ops[0]; r = sum(ops[1:], [])
            if opn in ("v_fmac_f32", "v_writelane_b32", "v_pk_fmac_f16") or isdpp: r = r + ops[0]
            if opn in ("v_add_co_u32", "v_sub_co_u32", "v_addc_co_u32", "v_subb_co_u32"): w = ops[0] + ops[1]; r = sum(ops[2:], [])
            if opn == "v_cndmask_b32" and len(ops) == 3: r = r + _regs("vcc")
            kw["dpp"] = isdpp
        elif op.startswith("buffer_load") or op.startswith("global_load"):
            kind = "vmem"
            if " lds" in " " + mods or mods.endswith("lds"):
                w = []; r = sum(ops, []) + _regs("m0"); kw["storedata"] = "lds"
            else:
                w = ops[0]; r = sum(ops[1:], [])
        elif op.startswith("buffer_store"):
            kind = "vmem"; r = sum(ops, []); kw["storedata"] = set(ops[0]); kw["wide"] = op.endswith("x4") or op.endswith("x3")
        elif op.startswith("buffer_atomic"):
            kind = "vmem"; r = sum(ops, []); w = ops[0] if "sc0" in mods else []
        elif op.startswith("buffer_"):
            kind = "vmem"
        elif op.startswith("ds_"):
            kind = "ds"
            if op.startswith("ds_read") or "rtn" in op or op.startswith("ds_bpermute") or op.startswith("ds_permute") or op.startswith("ds_swizzle"):
                w = ops[0]; r = sum(ops[1:], [])
            else:
                r = sum(ops, [])
        elif op.startswith("s_load") or op.startswith("s_memrealtime") or op.startswith("s_memtime"):
            kind = "smem"; w = ops[0]; r = sum(ops[1:], [])
        elif op.startswith("s_"):
            kind = "salu"
            if op.startswith("s_cmp") or op.startswith("s_cbranch") or op in ("s_branch", "s_waitcnt", "s_barrier", "s_sleep", "s_endpgm", "s_setprio", "s_bitcmp1_b32", "s_bitcmp0_b32", "s_setpc_b64"):
                r = sum(ops, [])
            else:
                w = ops[0] if ops else []; r = sum(ops[1:], [])
                if "saveexec" in op: w = w + _regs("exec"); r = r + _regs("exec")
        else:
            raise ValueError("unknown op " + text)
        ws, rs = set(w), set(r)
        need = 0
        acc = 0
        VAL = ("valu", "trans", "dpp", "perm", "rdlane")
        isvalu = kind in VAL
        for p in reversed(self.hist):
            if acc >= 12: break
            req = 0
            pv = {x for x in p.w if x[0] in "va"}
            psg = {x for x in p.w if x[0] == "s"}
            if p.kind in VAL:
                if kind == "mfma" and pv & rs: req = max(req, 2)
                if (kind == "dpp" or kind == "perm") and pv & rs: req = max(req, 2)
                if kind == "rdlane" and pv & rs: req = max(req, 1)
                if p.kind == "trans" and isvalu and pv & rs: req = max(req, 1)
                if psg & rs:
                    if kind == "vmem": req = max(req, 5)
                    elif kind == "rdlane": req = max(req, 4)
                    elif isvalu or kind == "mfma": req = max(req, 2)
                if ("s", "exec_lo") in psg:
                    if kind == "dpp": req = max(req, 5)
                    if kind in ("mfma", "perm", "rdlane"): req = max(req, 4)
            if p.kind == "mfma":
                if kind == "mfma":
                    if pv & kw["srcab"]: req = max(req, 8)
                    c = set(kw["srcc"])
                    if pv & c and c != pv: req = max(req, 6)
                    if pv & ws and ws != pv: req = max(req, 8)
                    if pv & ws and not (pv & c): req = max(req, 8)
                elif pv & (rs | ws): req = max(req, 8)
                if isvalu and set(p.srcc) & ws: req = max(req, 3)
            if p.kind == "vmem" and p.wide and p.storedata & ws: req = max(req, 2)
            if p.kind == "salu" and ("s", "m0") in p.w and kw.get("storedata") == "lds": req = max(req, 1)
            need = max(need, req - acc)
            acc += p.states
        if need > 0: self.nop(need)
        self._push(text, op, kind, w, r, **kw)

    def text(self):
        return "\n".join(self.lines) + "\n"
```

```python
import struct, sys
from asmlib import Asm
KN = "gated_mix__mha_block_cached__sliding_block_cached__decode"

def f32(x): return "0x%08x" % struct.unpack("<I", struct.pack("<f", x))[0]
LOG2E = 1.4426950408889634
SCALE = 128 ** -0.5

QB, PB, PBML, YB, YA, YAML, STAMP = 0x000000, 0x080000, 0x100000, 0x200000, 0x400000, 0x600000, 0x1000000
CNT_QB, CNT_PB, CNT_YB, CNT_CLR = 0, 32, 128, 192
L_QP, L_QBF, L_CO, L_CM, L_CL, L_QB = 0, 2048, 3072, 5120, 5136, 5376
LDS_BYTES = 6400

HEADER = open("cdna_kernels/" + KN + ".s.ref").read().split("; Override launch")[0] if True else ""

def gen(D=4, mimic=True, stamps=False, spin=200000, lds=LDS_BYTES, ntkv="nt", kfirst=0):
    a = Asm()
    CS = LOG2E if mimic else LOG2E * SCALE
    NT = 64
    assert NT % D == 0
    a.raw(HEADER.rstrip("\n"))
    a.raw(f"; @launch grid=(256,1,1) block=(512,1,1) lds={lds}")
    a.raw('.amdgcn_target "amdgcn-amd-amdhsa--gfx950"')
    a.raw(".text")
    a.raw(f".globl {KN}_kernel")
    a.raw(".p2align 8")
    a.raw(f".type {KN}_kernel,@function")
    a.raw(f"{KN}_kernel:")

    nst = [0]
    def stamp(idx):
        if not stamps: return
        a("s_memrealtime s[96:97]")
        a("s_waitcnt lgkmcnt(0)")
        a(f"s_mov_b32 s{80+idx}, s96")
    def stamp_init():
        if not stamps: return
        for i in range(16): a(f"s_mov_b32 s{80+i}, 0")
    def stamp_flush(ws_srd, vt, vt2):
        if not stamps: return
        a("s_mov_b64 exec, -1")
        for i in range(16): a(f"v_writelane_b32 v{vt}, s{80+i}, {i}")
        a(f"v_lshlrev_b32 v{vt2}, 2, v0")
        a("s_lshl_b32 s96, s2, 3"); a("s_add_u32 s96, s96, s3"); a("s_lshl_b32 s96, s96, 6"); a(f"s_add_u32 s96, s96, {STAMP}")
        a("s_mov_b64 exec, 0xffff")
        a(f"buffer_store_dword v{vt}, v{vt2}, s[{ws_srd}:{ws_srd+3}], s96 offen")

    def selectors(tmp):
        a(f"v_and_b32 v{tmp}, 1, v0")
        a(f"v_cmp_eq_u32 vcc, 1, v{tmp}")
        a(f"v_mov_b32 v{tmp+1}, 0x0c0c0100"); a(f"v_mov_b32 v{tmp+2}, 0x01000c0c")
        a(f"v_cndmask_b32 v{tmp+1}, v{tmp+1}, v{tmp+2}, vcc")
        a(f"v_mov_b32 v{tmp+2}, 0x0c0c0302"); a(f"v_mov_b32 v{tmp+3}, 0x03020c0c")
        a(f"v_cndmask_b32 v{tmp+2}, v{tmp+2}, v{tmp+3}, vcc")
        a(f"v_bfe_u32 v{tmp}, v0, 1, 2")
        a(f"v_mov_b32 v{tmp+3}, 0x0c0c0c0c")
        for r in range(4):
            a(f"v_cmp_eq_u32 vcc, {r}, v{tmp}")
            a(f"v_cndmask_b32 v{4+r}, v{tmp+3}, v{tmp+1}, vcc")
            a(f"v_cndmask_b32 v{8+r}, v{tmp+3}, v{tmp+2}, vcc")

    def diag(dst, src, half):
        for r in range(4):
            a(f"v_perm_b32 v{dst+r}, v{src}, v{src}, v{(8 if half else 4)+r}")

    def mfma(d, A, B, c):
        cs = "0" if c is None else f"v[{c}:{c+3}]"
        a(f"v_mfma_f32_16x16x32_bf16 v[{d}:{d+3}], v[{A}:{A+3}], v[{B}:{B+3}], {cs}")

    slow_paths = []
    def tile(ns, K, V, R, waitK, waitV, issueK, issueV):
        a(f"s_waitcnt vmcnt({waitK})")
        for i in range(4):
            for s in range(ns):
                mfma(R["S"][s], K + 4*i, R["Q"][s] + 4*i, None if i == 0 else R["S"][s])
        issueK()
        if mimic:
            for s in range(ns):
                S, PK = R["S"][s], R["PK"][s]
                a(f"v_cvt_pk_bf16_f32 v{PK}, v{S}, v{S+1}"); a(f"v_cvt_pk_bf16_f32 v{PK+1}, v{S+2}, v{S+3}")
                a(f"v_lshlrev_b32 v{S}, 16, v{PK}"); a(f"v_and_b32 v{S+1}, 0xffff0000, v{PK}")
                a(f"v_lshlrev_b32 v{S+2}, 16, v{PK+1}"); a(f"v_and_b32 v{S+3}, 0xffff0000, v{PK+1}")
                for i in range(4): a(f"v_mul_f32 v{S+i}, {f32(SCALE)}, v{S+i}")
                a(f"v_cvt_pk_bf16_f32 v{PK}, v{S}, v{S+1}"); a(f"v_cvt_pk_bf16_f32 v{PK+1}, v{S+2}, v{S+3}")
                a(f"v_lshlrev_b32 v{S}, 16, v{PK}"); a(f"v_and_b32 v{S+1}, 0xffff0000, v{PK}")
                a(f"v_lshlrev_b32 v{S+2}, 16, v{PK+1}"); a(f"v_and_b32 v{S+3}, 0xffff0000, v{PK+1}")
        for s in range(ns):
            S, T = R["S"][s], R["T"][s]
            a(f"v_max3_f32 v{T}, v{S}, v{S+1}, v{S+2}")
            a(f"v_max_f32 v{T}, v{T}, v{S+3}")
        a(f"v_cmp_gt_f32 vcc, v{R['T'][0]}, v{R['M'][0]}")
        if ns == 2:
            a(f"v_cmp_gt_f32 s[76:77], v{R['T'][1]}, v{R['M'][1]}")
            a("s_or_b64 vcc, vcc, s[76:77]")
        ls, lb = a.newlabel("SLOW"), a.newlabel("BACK")
        a(f"s_cbranch_vccnz {ls}")
        a.label(lb)
        slow_paths.append((ls, lb, ns, R))
        for s in range(ns):
            S = R["S"][s]
            for i in range(4): a(f"v_fma_f32 v{S+i}, v{S+i}, s75, v{R['NM'][s]}")
            for i in range(4): a(f"v_exp_f32 v{S+i}, v{S+i}")
        for s in range(ns):
            S, PK, L, T = R["S"][s], R["PK"][s], R["L"][s], R["T"][s]
            a(f"v_cvt_pk_bf16_f32 v{PK}, v{S}, v{S+1}"); a(f"v_cvt_pk_bf16_f32 v{PK+1}, v{S+2}, v{S+3}")
            a(f"v_add_f32 v{T}, v{S}, v{S+1}"); a(f"v_add_f32 v{S+2}, v{S+2}, v{S+3}")
            a(f"v_add_f32 v{T}, v{T}, v{S+2}"); a(f"v_add_f32 v{L}, v{L}, v{T}")
        first = True
        for s in range(ns):
            for j in range(4): diag(R["AOP"] + 4*j, R["PK"][s] + (j >> 1), j & 1)
            if first: a(f"s_waitcnt vmcnt({waitV})"); first = False
            for j in range(4): mfma(R["O"][s], R["AOP"] + 4*j, V + 4*j, R["O"][s])
        issueV()

    def emit_slow():
        for ls, lb, ns, R in slow_paths:
            a.label(ls)
            a.nop(8)
            U = R["U"]
            for s in range(ns):
                T, M, NM, L, O = R["T"][s], R["M"][s], R["NM"][s], R["L"][s], R["O"][s]
                a(f"v_mov_b32 v{U}, v{T}"); a(f"v_permlane16_swap_b32 v{T}, v{U}"); a(f"v_max_f32 v{T}, v{T}, v{U}")
                a(f"v_mov_b32 v{U}, v{T}"); a(f"v_permlane32_swap_b32 v{T}, v{U}"); a(f"v_max3_f32 v{T}, v{T}, v{U}, v{M}")
                a(f"v_sub_f32 v{U}, v{M}, v{T}"); a(f"v_mul_f32 v{U}, s75, v{U}"); a(f"v_exp_f32 v{U}, v{U}")
                a(f"v_mov_b32 v{M}, v{T}")
                a(f"v_mul_f32 v{NM}, s74, v{T}")
                a(f"v_mul_f32 v{L}, v{L}, v{U}")
                if ns == 2:
                    a(f"v_readlane_b32 s76, v{U}, 0"); a(f"v_readlane_b32 s77, v{U}, 8")
                    a(f"v_mov_b32 v{U}, s76"); a(f"v_mov_b32 v{T}, s77")
                    a(f"v_cndmask_b32 v{U}, v{U}, v{T}, s[72:73]")
                for i in range(4): a(f"v_mul_f32 v{O+i}, v{O+i}, v{U}")
            a.settle()
            a(f"s_branch {lb}")
        slow_paths.clear()

    a("s_cmp_ge_u32 s2, 256")
    a("s_cbranch_scc1 L_END")
    a("s_load_dwordx2 s[12:13], s[0:1], 8")
    a("s_load_dwordx2 s[16:17], s[0:1], 16")
    a("v_lshrrev_b32 v1, 6, v0")
    a("v_and_b32 v0, 63, v0")
    a("s_and_b32 s4, s2, 7")
    a("v_readfirstlane_b32 s3, v1")
    a("s_lshr_b32 s5, s2, 3")
    a("s_lshr_b32 s6, s4, 1"); a("s_lshl_b32 s6, s6, 3"); a("s_lshr_b32 s7, s5, 2"); a("s_add_u32 s6, s6, s7")
    a("s_and_b32 s7, s5, 3")
    a(f"s_mov_b32 s75, {f32(CS)}"); a(f"s_mov_b32 s74, {f32(-CS)}")
    a("s_cmp_ge_u32 s3, 4")
    a("s_cbranch_scc1 L_AUX")

    a("v_and_b32 v3, 15, v0"); a("v_lshrrev_b32 v4, 4, v0")
    a("v_lshlrev_b32 v1, 8, v3"); a("v_lshl_add_u32 v1, v4, 4, v1")
    a("v_lshlrev_b32 v2, 4, v3"); a("v_lshl_add_u32 v2, v4, 10, v2")
    a("s_lshl_b32 s20, s7, 5"); a("s_add_u32 s20, s20, s6"); a("s_lshl_b32 s20, s20, 1")
    a("s_and_b32 s21, s4, 1"); a("s_add_u32 s20, s20, s21"); a("s_lshl_b32 s20, s20, 20")
    a("s_add_u32 s14, s20, 0x100000"); a("s_mov_b32 s18, s14")
    a("s_mov_b32 s15, 0x20000"); a("s_mov_b32 s19, 0x20000")
    a("s_lshl_b32 s21, s3, 12"); a("s_add_u32 s20, s20, s21")
    a("s_mov_b32 s21, s20")
    SL = 64
    def sK(d): return SL + 32*d
    def sV(d): return SL + 32*d + 16
    def iK(d):
        for i in range(4): a(f"buffer_load_dwordx4 v[{sK(d)+4*i}:{sK(d)+4*i+3}], v1, s[12:15], s20 offen offset:{64*i} {ntkv}")
        a("s_add_u32 s20, s20, 0x4000")
    def iV(d):
        for j in range(4): a(f"buffer_load_dwordx4 v[{sV(d)+4*j}:{sV(d)+4*j+3}], v2, s[16:19], s21 offen offset:{256*j} {ntkv}")
        a("s_add_u32 s21, s21, 0x4000")
    a("s_waitcnt lgkmcnt(0)")
    for d in range(D): iK(d); iV(d)
    stamp_init(); stamp(0)
    if stamps:
        a("s_load_dwordx2 s[24:25], s[0:1], 104"); a("s_mov_b32 s26, 0x40000000"); a("s_mov_b32 s27, 0x20000")
    selectors(28)
    R = dict(Q=[12], S=[28], PK=[36], T=[38], M=[39], NM=[40], L=[41], O=[60], AOP=44, U=42)
    a(f"v_mov_b32 v39, {f32(-3.0e38)}"); a(f"v_mov_b32 v40, {f32(3.0e38*CS if 3.0e38*CS < 3.4e38 else 3.0e38)}"); a("v_mov_b32 v41, 0")
    for i in range(4): a(f"v_mov_b32 v{60+i}, 0")
    a("v_bfe_u32 v34, v0, 4, 1"); a("v_and_b32 v35, 15, v0")
    a("v_lshlrev_b32 v43, 5, v35"); a("v_lshl_add_u32 v43, v34, 4, v43")
    a("s_lshl_b32 s22, s3, 8")
    a("v_lshrrev_b32 v32, 1, v43"); a("v_add_u32 v32, s22, v32")
    a("v_lshrrev_b32 v33, 4, v0"); a("v_lshlrev_b32 v33, 4, v33"); a("v_add_u32 v33, s22, v33")
    a("s_barrier")
    for w in range(4): a(f"ds_read_b128 v[{44+4*w}:{47+4*w}], v43 offset:{L_QP + 512*w}")
    a("s_waitcnt lgkmcnt(0)")
    for i in range(4):
        a(f"v_add_f32 v{44+i}, v{44+i}, v{48+i}"); a(f"v_add_f32 v{52+i}, v{52+i}, v{56+i}")
    for i in range(4): a(f"v_add_f32 v{44+i}, v{44+i}, v{52+i}")
    a("v_cvt_pk_bf16_f32 v48, v44, v45"); a("v_cvt_pk_bf16_f32 v49, v46, v47")
    a(f"ds_write_b64 v32, v[48:49] offset:{L_QBF}")
    a("s_waitcnt lgkmcnt(0)")
    for i in range(4): a(f"ds_read_b128 v[{12+4*i}:{15+4*i}], v33 offset:{L_QBF + 64*i}")
    a(f"s_mov_b32 s23, {NT // D}")
    a("s_waitcnt lgkmcnt(0)")
    stamp(1)
    a.label("L_SLOOP")
    for d in range(D):
        tile(1, sK(d), sV(d), R, (2*D-1)*4, (2*D-1)*4, lambda: iK(d), lambda: iV(d))
    a("s_sub_u32 s23, s23, 1"); a("s_cmp_lg_u32 s23, 0")
    a("s_cbranch_scc1 L_SLOOP")
    stamp(2)
    a("v_lshrrev_b32 v34, 4, v0"); a("v_lshlrev_b32 v34, 2, v34"); a("s_lshl_b32 s22, s3, 4"); a("v_add_u32 v34, s22, v34")
    a("s_lshl_b32 s22, s3, 2"); a("v_mov_b32 v35, s22")
    a("s_lshl_b32 s22, s3, 9"); a("v_add_u32 v43, s22, v43")
    a(f"ds_write_b32 v34, v41 offset:{L_CL}")
    a(f"ds_write_b32 v35, v39 offset:{L_CM}")
    a(f"ds_write_b128 v43, v[60:63] offset:{L_CO}")
    a("s_waitcnt lgkmcnt(0)")
    a("s_barrier")
    stamp(3)
    stamp_flush(24, 44, 45)
    a("s_endpgm")
    emit_slow()

    a.label("L_AUX")
    X, WQ, WO, WS, DBG, KB, VB, WQB, WOB, GW, OUT = 8, 12, 16, 20, 24, 28, 32, 36, 40, 44, 48
    a("s_waitcnt lgkmcnt(0)")
    for srd, off in ((X, 0), (WQ, 24), (WO, 32), (WS, 104), (DBG, 96), (KB, 48), (VB, 56), (WQB, 64), (WOB, 72), (GW, 80), (OUT, 88)):
        a(f"s_load_dwordx2 s[{srd}:{srd+1}], s[0:1], {off}")
    for srd, n in ((X, 4096), (WQ, 0x400000), (WO, 0x400000), (WS, 0x40000000), (DBG, 256), (KB, 0x4000000), (VB, 0x4000000), (WQB, 0x400000), (WOB, 0x400000), (GW, 1024), (OUT, 4096)):
        a(f"s_mov_b32 s{srd+2}, {hex(n)}"); a(f"s_mov_b32 s{srd+3}, 0x20000")
    a("s_sub_u32 s52, s3, 4")
    a("v_and_b32 v28, 15, v0"); a("v_lshrrev_b32 v29, 4, v0")
    a("v_lshlrev_b32 v1, 4, v28"); a("v_lshl_add_u32 v1, v29, 18, v1")
    a("v_lshlrev_b32 v2, 6, v29")
    a("s_lshl_b32 s53, s52, 20"); a("s_lshl_b32 s54, s6, 8"); a("s_add_u32 s53, s53, s54")
    a("s_lshl_b32 s54, s7, 10"); a("s_lshl_b32 s55, s52, 8"); a("s_add_u32 s54, s54, s55")
    W = 64
    a("s_waitcnt lgkmcnt(0)")
    for i in range(4): a(f"buffer_load_dwordx4 v[{12+4*i}:{15+4*i}], v2, s[{X}:{X+3}], s54 offen offset:{16*i}")
    for j in range(32):
        a(f"buffer_load_dwordx4 v[{W+4*j}:{W+4*j+3}], v1, s[{WQ}:{WQ+3}], s53 offen")
        if j < 31: a("s_add_u32 s53, s53, 0x2000")
    stamp_init(); stamp(0)
    selectors(30)
    a("s_mov_b32 s72, 0"); a("s_mov_b32 s73, -1")
    a("v_bfe_u32 v30, v0, 4, 1")
    a("v_lshlrev_b32 v3, 5, v28"); a("v_lshl_add_u32 v3, v30, 4, v3")
    a("s_lshl_b32 s55, s52, 9"); a("v_add_u32 v31, s55, v3")
    for j in range(32):
        ao = 44 + 4*(j & 3)
        if j == 0: a("s_waitcnt vmcnt(32)")
        diag(ao, 12 + (j >> 1), j & 1)
        a(f"s_waitcnt vmcnt({31-j})")
        mfma(60, ao, W + 4*j, None if j == 0 else 60)
    a(f"ds_write_b128 v31, v[60:63] offset:{L_QP}")
    a("s_waitcnt lgkmcnt(0)")
    a("s_barrier")
    stamp(1)
    a("v_lshrrev_b32 v36, 5, v0"); a("v_lshl_add_u32 v36, v36, 4, v28"); a("v_lshlrev_b32 v36, 13, v36"); a("v_lshl_add_u32 v36, v30, 4, v36")
    a("s_lshl_b32 s56, s7, 19"); a("s_and_b32 s57, s4, 1"); a("s_lshl_b32 s57, s57, 12"); a("s_add_u32 s56, s56, s57")
    a("s_lshl_b32 s57, s6, 5"); a("s_add_u32 s56, s56, s57"); a(f"s_add_u32 s56, s56, {YA}")
    a("s_lshl_b32 s58, s7, 5"); a("s_add_u32 s58, s58, s6"); a("s_lshl_b32 s58, s58, 1"); a("s_and_b32 s57, s4, 1"); a("s_add_u32 s58, s58, s57")
    a("s_lshl_b32 s58, s58, 3"); a(f"s_add_u32 s58, s58, {YAML}")
    a("s_cmp_lg_u32 s52, 0")
    a("s_cbranch_scc1 L_AUXWO")

    def atomic_inc(soff_or_imm):
        a("s_mov_b64 exec, 1")
        a("v_mov_b32 v37, 1")
        if isinstance(soff_or_imm, int): a(f"buffer_atomic_add v37, off, s[{DBG}:{DBG+3}], 0 offset:{soff_or_imm} sc1")
        else: a(f"buffer_atomic_add v37, off, s[{DBG}:{DBG+3}], {soff_or_imm} sc1")
        a("s_mov_b64 exec, -1")
    def poll(soff, imm, target):
        l, ld = a.newlabel("POLL"), a.newlabel("POLLD")
        a(f"s_mov_b32 s70, {spin}")
        a.label(l)
        a(f"buffer_load_dword v37, off, s[{DBG}:{DBG+3}], {soff} offset:{imm} sc1")
        a("s_waitcnt vmcnt(0)")
        a("v_readfirstlane_b32 s71, v37")
        a(f"s_cmp_ge_u32 s71, {target}")
        a(f"s_cbranch_scc1 {ld}")
        a("s_sleep 16")
        a("s_sub_u32 s70, s70, 1"); a("s_cmp_lg_u32 s70, 0")
        a(f"s_cbranch_scc1 {l}")
        a.label(ld)

    a("v_lshlrev_b32 v1, 4, v28"); a("v_lshl_add_u32 v1, v29, 17, v1")
    a("v_lshrrev_b32 v2, 3, v28"); a("v_lshlrev_b32 v2, 10, v2"); a("v_lshl_add_u32 v2, v29, 5, v2")
    a("s_lshl_b32 s53, s4, 19"); a("s_lshl_b32 s54, s5, 8"); a("s_add_u32 s53, s53, s54")
    a("s_lshl_b32 s54, s4, 7")
    for t in range(2):
        for i in range(2): a(f"buffer_load_dwordx4 v[{12+8*t+4*i}:{15+8*t+4*i}], v2, s[{X}:{X+3}], s54 offen offset:{2048*t+16*i}")
    for j in range(16):
        a(f"buffer_load_dwordx4 v[{W+4*j}:{W+4*j+3}], v1, s[{WQB}:{WQB+3}], s53 offen nt")
        if j < 15: a("s_add_u32 s53, s53, 0x2000")
    for i in range(4): a(f"v_mov_b32 v{32+i}, -1")
    for w in range(4):
        for u in range(2):
            a(f"s_add_u32 s57, s56, {w*1024 + u*262144}")
            a(f"buffer_store_dwordx4 v[32:35], v36, s[{WS}:{WS+3}], s57 offen sc1")
    a("s_mov_b64 exec, 1")
    a(f"buffer_store_dwordx2 v[32:33], off, s[{WS}:{WS+3}], s58 sc1")
    a("s_mov_b64 exec, -1")
    for j in range(16):
        if j == 0: a("s_waitcnt vmcnt(25)")
        for t in range(2): diag(44 + 8*(j & 1) + 4*t, 12 + 8*t + (j >> 1), j & 1)
        a(f"s_waitcnt vmcnt({9+15-j})")
        for t in range(2): mfma(192 + 4*t, 44 + 8*(j & 1) + 4*t, W + 4*j, None if j == 0 else 192 + 4*t)
    a("v_lshrrev_b32 v2, 5, v0"); a("v_lshl_add_u32 v2, v2, 9, v3")
    a("s_lshl_b32 s53, s2, 11")
    for t in range(2): a(f"buffer_store_dwordx4 v[{192+4*t}:{195+4*t}], v2, s[{WS}:{WS+3}], s53 offen offset:{QB + 1024*t} sc1")
    a("s_waitcnt vmcnt(0)")
    a("s_lshr_b32 s53, s5, 2"); a("s_lshl_b32 s53, s53, 2")
    atomic_inc("s53")
    atomic_inc(CNT_CLR)
    stamp(2)
    a("v_lshlrev_b32 v1, 8, v28"); a("v_lshl_add_u32 v1, v29, 4, v1")
    a("v_lshlrev_b32 v2, 4, v28"); a("v_lshl_add_u32 v2, v29, 10, v2")
    a("s_lshl_b32 s60, s7, 3"); a("s_add_u32 s60, s60, s4"); a("s_lshl_b32 s60, s60, 21")
    a("s_lshr_b32 s59, s5, 2"); a("s_lshl_b32 s61, s59, 16"); a("s_add_u32 s60, s60, s61"); a("s_add_u32 s60, s60, 0x180000")
    a(f"s_add_u32 s{KB+2}, s60, 0x10000"); a(f"s_mov_b32 s{VB+2}, s{KB+2}")
    a("s_mov_b32 s61, s60")
    DB = 4
    def bK(d):
        for i in range(4): a(f"buffer_load_dwordx4 v[{W+32*d+4*i}:{W+32*d+4*i+3}], v1, s[{KB}:{KB+3}], s60 offen offset:{64*i} {ntkv}")
        a("s_add_u32 s60, s60, 0x1000")
    def bV(d):
        for j in range(4): a(f"buffer_load_dwordx4 v[{W+32*d+16+4*j}:{W+32*d+16+4*j+3}], v2, s[{VB}:{VB+3}], s61 offen offset:{256*j} {ntkv}")
        a("s_add_u32 s61, s61, 0x1000")
    a("v_lshlrev_b32 v38, 4, v0")
    a("s_lshr_b32 s62, s2, 6"); a("s_lshl_b32 s63, s62, 10")
    a(f"buffer_load_dwordx4 v[12:15], v38, s[{X}:{X+3}], s63 offen")
    a(f"buffer_load_dwordx4 v[16:19], v38, s[{GW}:{GW+3}], 0 offen")
    for d in range(DB): bK(d); bV(d)
    a("s_waitcnt vmcnt(32)")
    for i in range(4):
        a(f"v_lshlrev_b32 v20, 16, v{12+i}"); a(f"v_and_b32 v21, 0xffff0000, v{12+i}")
        a(f"v_lshlrev_b32 v22, 16, v{16+i}"); a(f"v_and_b32 v23, 0xffff0000, v{16+i}")
        a("v_mul_f32 v20, v20, v22"); a("v_mul_f32 v21, v21, v23")
        a("v_cvt_pk_bf16_f32 v20, v20, v21")
        a("v_lshlrev_b32 v21, 16, v20"); a("v_and_b32 v20, 0xffff0000, v20")
        if i == 0: a("v_add_f32 v24, v20, v21")
        else: a("v_add_f32 v24, v24, v20"); a("v_add_f32 v24, v24, v21")
    for r in (1, 2, 4, 8): a(f"v_add_f32_dpp v24, v24, v24 row_ror:{r} row_mask:0xf bank_mask:0xf")
    a("v_mov_b32 v25, v24"); a("v_permlane16_swap_b32 v24, v25"); a("v_add_f32 v24, v24, v25")
    a("v_mov_b32 v25, v24"); a("v_permlane32_swap_b32 v24, v25"); a("v_add_f32 v24, v24, v25")
    a("v_cvt_pk_bf16_f32 v24, v24, v24"); a("v_and_b32 v24, 0xffff0000, v24")
    a(f"v_mul_f32 v24, {f32(-LOG2E)}, v24"); a("v_exp_f32 v24, v24"); a("v_add_f32 v24, 1.0, v24"); a("v_rcp_f32 v24, v24")
    a("v_cvt_pk_bf16_f32 v24, v24, v24"); a("v_and_b32 v240, 0xffff0000, v24")
    a("v_sub_f32 v24, 1.0, v240"); a("v_cvt_pk_bf16_f32 v24, v24, v24"); a("v_and_b32 v241, 0xffff0000, v24")
    a("s_lshl_b32 s53, s4, 2")
    poll("s53", CNT_QB, 32)
    stamp(3)
    a("v_lshlrev_b32 v38, 14, v29"); a("v_lshl_add_u32 v38, v28, 5, v38")
    a("s_lshl_b32 s53, s4, 16"); a("s_lshl_b32 s54, s7, 9"); a("s_add_u32 s53, s53, s54")
    if QB: a(f"s_add_u32 s53, s53, {QB}")
    for hf in range(2):
        for s in range(4):
            for u in range(2):
                r = 192 + 8*s + 4*u
                a(f"buffer_load_dwordx4 v[{r}:{r+3}], v38, s[{WS}:{WS+3}], s53 offen offset:{(s&1)*2048+16*u} sc1")
            if s & 1: a("s_add_u32 s53, s53, 0x1000")
        a("s_waitcnt vmcnt(0)")
        for e in range(8):
            a(f"v_add_f32 v{192+e}, v{192+e}, v{200+e}"); a(f"v_add_f32 v{208+e}, v{208+e}, v{216+e}")
            if hf == 0: a(f"v_add_f32 v{12+e}, v{192+e}, v{208+e}")
            else: a(f"v_add_f32 v{192+e}, v{192+e}, v{208+e}"); a(f"v_add_f32 v{12+e}, v{12+e}, v{192+e}")
    for e in range(4): a(f"v_cvt_pk_bf16_f32 v{20+e}, v{12+2*e}, v{13+2*e}")
    a("v_lshlrev_b32 v38, 4, v0")
    a(f"ds_write_b128 v38, v[20:23] offset:{L_QB}")
    a("v_lshrrev_b32 v38, 3, v28"); a("v_lshlrev_b32 v38, 8, v38"); a("v_lshl_add_u32 v38, v29, 4, v38")
    a("s_waitcnt lgkmcnt(0)")
    for t in range(2):
        for i in range(4): a(f"ds_read_b128 v[{192+16*t+4*i}:{195+16*t+4*i}], v38 offset:{L_QB + 512*t + 64*i}")
    RB = dict(Q=[192, 208], S=[12, 16], PK=[20, 22], T=[224, 225], M=[226, 227], NM=[228, 229], L=[230, 231], O=[232, 236], AOP=44, U=24)
    for t in range(2):
        a(f"v_mov_b32 v{226+t}, {f32(-3.0e38)}"); a(f"v_mov_b32 v{228+t}, {f32(3.0e38*CS if 3.0e38*CS < 3.4e38 else 3.0e38)}"); a(f"v_mov_b32 v{230+t}, 0")
    for i in range(8): a(f"v_mov_b32 v{232+i}, 0")
    a(f"s_mov_b32 s64, {16 // DB}")
    a("s_waitcnt lgkmcnt(0)")
    a.label("L_BLOOP")
    for d in range(DB):
        tile(2, W + 32*d, W + 32*d + 16, RB, (2*DB-1)*4, (2*DB-1)*4, lambda: bK(d), lambda: bV(d))
    a("s_sub_u32 s64, s64, 1"); a("s_cmp_lg_u32 s64, 0")
    a("s_cbranch_scc1 L_BLOOP")
    stamp(4)
    a("v_lshrrev_b32 v2, 5, v0"); a("v_lshl_add_u32 v2, v2, 12, v3")
    a("s_lshl_b32 s53, s7, 5"); a("s_lshl_b32 s54, s4, 2"); a("s_add_u32 s53, s53, s54"); a("s_lshl_b32 s53, s53, 3"); a("s_add_u32 s53, s53, s59")
    a("s_lshl_b32 s54, s53, 3"); a(f"s_add_u32 s54, s54, {PBML}")
    a("s_lshl_b32 s53, s53, 9"); a(f"s_add_u32 s53, s53, {PB}")
    a("s_add_u32 s55, s53, 0x2000")
    a(f"buffer_store_dwordx4 v[232:235], v2, s[{WS}:{WS+3}], s53 offen sc1")
    a(f"buffer_store_dwordx4 v[236:239], v2, s[{WS}:{WS+3}], s55 offen sc1")
    for t in range(2):
        L = 230 + t
        a(f"v_mov_b32 v24, v{L}"); a(f"v_permlane16_swap_b32 v{L}, v24"); a(f"v_add_f32 v{L}, v{L}, v24")
        a(f"v_mov_b32 v24, v{L}"); a(f"v_permlane32_swap_b32 v{L}, v24"); a(f"v_add_f32 v{13+2*t}, v{L}, v24")
        a(f"v_sub_f32 v{12+2*t}, 0, v{228+t}")
    a("v_lshlrev_b32 v2, 3, v0")
    a("s_mov_b64 exec, 0x101")
    a(f"buffer_store_dwordx2 v[12:13], v2, s[{WS}:{WS+3}], s54 offen sc1")
    a(f"buffer_store_dwordx2 v[14:15], v2, s[{WS}:{WS+3}], s54 offen offset:128 sc1")
    a("s_mov_b64 exec, -1")
    a("s_waitcnt vmcnt(0)")
    a("s_lshl_b32 s53, s4, 2"); a(f"s_add_u32 s53, s53, {CNT_PB}")
    atomic_inc("s53")
    a("v_lshlrev_b32 v1, 4, v28"); a("v_lshl_add_u32 v1, v29, 12, v1")
    a("s_lshl_b32 s53, s2, 14")
    for j in range(4):
        for cb in range(4):
            r = W + 16*j + 4*cb
            a(f"buffer_load_dwordx4 v[{r}:{r+3}], v1, s[{WOB}:{WOB+3}], s53 offen offset:{1024*j+256*cb} nt")
    a("s_lshr_b32 s53, s5, 2"); a("s_lshl_b32 s53, s53, 2")
    poll("s53", CNT_PB, 32)
    stamp(5)
    a("v_lshrrev_b32 v1, 3, v28"); a("v_lshlrev_b32 v1, 8, v1"); a("v_and_b32 v2, 7, v28"); a("v_add_u32 v1, v1, v2")
    a("v_lshlrev_b32 v2, 3, v1")
    a("v_lshlrev_b32 v1, 9, v1"); a("v_lshl_add_u32 v1, v29, 4, v1")
    a("s_lshl_b32 s53, s5, 12"); a("s_lshl_b32 s54, s4, 6"); a("s_add_u32 s53, s53, s54"); a(f"s_add_u32 s53, s53, {PB}")
    a("s_lshl_b32 s54, s5, 6"); a(f"s_add_u32 s54, s54, {PBML}")
    a("s_add_u32 s55, s53, 0x40000"); a("s_add_u32 s57, s54, 0x1000")
    a(f"buffer_load_dwordx4 v[12:15], v1, s[{WS}:{WS+3}], s53 offen sc1")
    a(f"buffer_load_dwordx4 v[16:19], v1, s[{WS}:{WS+3}], s55 offen sc1")
    a(f"buffer_load_dwordx2 v[20:21], v2, s[{WS}:{WS+3}], s54 offen sc1")
    a(f"buffer_load_dwordx2 v[22:23], v2, s[{WS}:{WS+3}], s57 offen sc1")
    a("s_waitcnt vmcnt(0)")
    DP8 = ("quad_perm:[1,0,3,2]", "quad_perm:[2,3,0,1]", "row_half_mirror")
    for t in range(2):
        O, M, L = 12 + 4*t, 20 + 2*t, 21 + 2*t
        a(f"v_mov_b32 v24, v{M}")
        for dp in DP8: a(f"v_max_f32_dpp v24, v24, v24 {dp} row_mask:0xf bank_mask:0xf")
        a(f"v_sub_f32 v24, v{M}, v24"); a("v_exp_f32 v24, v24")
        a(f"v_mul_f32 v{L}, v{L}, v24")
        for i in range(4): a(f"v_mul_f32 v{O+i}, v{O+i}, v24")
        for dp in DP8:
            a(f"v_add_f32_dpp v{L}, v{L}, v{L} {dp} row_mask:0xf bank_mask:0xf")
            for i in range(4): a(f"v_add_f32_dpp v{O+i}, v{O+i}, v{O+i} {dp} row_mask:0xf bank_mask:0xf")
        a(f"v_rcp_f32 v{L}, v{L}")
        for i in range(4): a(f"v_mul_f32 v{O+i}, v{O+i}, v{L}")
        a(f"v_cvt_pk_bf16_f32 v{M}, v{O}, v{O+1}"); a(f"v_cvt_pk_bf16_f32 v{L}, v{O+2}, v{O+3}")
    for t in range(2):
        for j in range(4): diag(44 + 4*j, 20 + 2*t + (j >> 1), j & 1)
        for j in range(4):
            for cb in range(4):
                acc = 192 + 16*t + 4*cb
                mfma(acc, 44 + 4*j, W + 16*j + 4*cb, None if j == 0 else acc)
    a("v_lshrrev_b32 v2, 5, v0"); a("v_lshlrev_b32 v2, 19, v2"); a("v_lshl_add_u32 v2, v28, 13, v2"); a("v_lshl_add_u32 v2, v30, 4, v2")
    a("s_lshl_b32 s53, s4, 10"); a("s_lshl_b32 s54, s5, 5"); a("s_add_u32 s53, s53, s54")
    for t in range(2):
        for cb in range(4):
            acc = 192 + 16*t + 4*cb
            a(f"s_add_u32 s54, s53, {YB + t*0x100000 + cb*0x20000}")
            a(f"buffer_store_dwordx4 v[{acc}:{acc+3}], v2, s[{WS}:{WS+3}], s54 offen sc1")
    a("s_waitcnt vmcnt(0)")
    atomic_inc(CNT_YB)
    stamp(6)
    poll("0", CNT_YB, 256)
    poll("0", CNT_CLR, 256)
    stamp(7)
    def reduce4(r, dst):
        a(f"v_permlane32_swap_b32 v{r}, v{r+1}"); a(f"v_permlane32_swap_b32 v{r+2}, v{r+3}")
        a(f"v_add_f32 v{r}, v{r}, v{r+1}"); a(f"v_add_f32 v{r+2}, v{r+2}, v{r+3}")
        a(f"v_permlane16_swap_b32 v{r}, v{r+2}"); a(f"v_add_f32 v{r}, v{r}, v{r+2}")
        a(f"v_add_f32_dpp v{r}, v{r}, v{r} row_ror:2 row_mask:0xf bank_mask:0xf")
        a(f"v_add_f32_dpp v{r}, v{r}, v{r} row_ror:4 row_mask:0xf bank_mask:0xf")
        a(f"v_add_f32_dpp v{dst}, v{r}, v{r} row_ror:8 row_mask:0xf bank_mask:0xf")
    a("v_lshlrev_b32 v38, 4, v0")
    a("s_lshl_b32 s53, s2, 13"); a(f"s_add_u32 s54, s53, {YB}"); a("s_add_u32 s55, s54, 0x1000")
    for i in range(8): a(f"buffer_load_dwordx4 v[{192+4*i}:{195+4*i}], v38, s[{WS}:{WS+3}], s{54 + (i>>2)} offen offset:{1024*(i&3)} sc1")
    a("s_waitcnt vmcnt(0)")
    for st in (16, 8, 4):
        for e in range(st): a(f"v_add_f32 v{192+e}, v{192+e}, v{192+st+e}")
    reduce4(192, 242)
    a("v_cvt_pk_bf16_f32 v242, v242, v242"); a("v_and_b32 v242, 0xffff0000, v242")
    a("v_mul_f32 v242, v242, v241"); a("v_cvt_pk_bf16_f32 v242, v242, v242"); a("v_and_b32 v242, 0xffff0000, v242")
    stamp(8)

    a.label("L_AUXWO")
    a("v_lshlrev_b32 v1, 4, v28"); a("v_lshl_add_u32 v1, v29, 13, v1")
    a("s_lshl_b32 s53, s6, 17"); a("s_lshl_b32 s54, s52, 15"); a("s_add_u32 s53, s53, s54"); a("s_add_u32 s54, s53, 0x1000")
    for j in range(8):
        for cb in range(4):
            r = W + 16*j + 4*cb
            a(f"buffer_load_dwordx4 v[{r}:{r+3}], v1, s[{WO}:{WO+3}], s{53 + (j>>2)} offen offset:{1024*(j&3)+256*cb}")
    a("v_lshlrev_b32 v38, 4, v0")
    a("s_lshl_b32 s64, s2, 13"); a(f"s_add_u32 s64, s64, {YA}"); a("s_add_u32 s65, s64, 0x1000")
    a("s_lshr_b32 s66, s2, 6"); a("s_lshl_b32 s66, s66, 9"); a(f"s_add_u32 s66, s66, {YAML}")
    a("v_lshrrev_b32 v39, 1, v0"); a("v_lshlrev_b32 v39, 4, v39")
    a("v_and_b32 v40, 1, v0"); a("v_lshlrev_b32 v40, 2, v40"); a("v_lshl_add_u32 v40, v30, 1, v40"); a("v_lshrrev_b32 v41, 5, v0"); a("v_add_u32 v40, v40, v41")
    a("v_lshlrev_b32 v40, 1, v40")
    a("s_lshl_b32 s67, s2, 4")
    a("s_lshl_b32 s55, s52, 10"); a("s_add_u32 s56, s56, s55"); a("s_add_u32 s57, s56, 0x40000")
    a("s_lshl_b32 s55, s52, 7"); a("v_lshlrev_b32 v2, 5, v29"); a("v_add_u32 v2, s55, v2")
    a("v_cmp_lt_u32 vcc, 7, v28"); a("v_mov_b32 v42, 0xffff0000"); a("v_cndmask_b32 v42, 0, v42, vcc")
    a("v_mov_b32 v43, 0")
    a("s_waitcnt vmcnt(0)")
    stamp(9)
    a("s_barrier")
    stamp(10)
    a(f"ds_read_b128 v[32:35], v43 offset:{L_CM}")
    for w in range(4):
        for u in range(2): a(f"ds_read_b128 v[{192+8*w+4*u}:{195+8*w+4*u}], v2 offset:{L_CO + 512*w + 16*u}")
    for w in range(4): a(f"ds_read_b128 v[{224+4*w}:{227+4*w}], v43 offset:{L_CL + 16*w}")
    a("s_waitcnt lgkmcnt(12)")
    a("v_max3_f32 v12, v32, v33, v34"); a("v_max_f32 v12, v12, v35")
    for w in range(4): a(f"v_sub_f32 v{32+w}, v{32+w}, v12")
    for w in range(4): a(f"v_mul_f32 v{32+w}, s75, v{32+w}")
    for w in range(4): a(f"v_exp_f32 v{32+w}, v{32+w}")
    a("v_mul_f32 v12, s75, v12")
    a("s_waitcnt lgkmcnt(4)")
    for e in range(8): a(f"v_mul_f32 v{16+e}, v{192+e}, v32")
    for w in range(1, 4):
        for e in range(8): a(f"v_fmac_f32 v{16+e}, v{192+8*w+e}, v{32+w}")
    for e in range(8): a(f"v_and_b32 v{192+e}, v{16+e}, v42")
    for e in range(8): a(f"v_sub_f32 v{16+e}, v{16+e}, v{192+e}")
    for j in range(8):
        diag(44 + 4*(j & 3), 16 + j, 1)
        for cb in range(4):
            acc = 200 + 4*cb
            mfma(acc, 44 + 4*(j & 3), W + 16*j + 4*cb, None if j == 0 else acc)
    a("s_waitcnt lgkmcnt(0)")
    for w in range(4):
        r = 224 + 4*w
        a(f"v_add_f32 v{r}, v{r}, v{r+1}"); a(f"v_add_f32 v{r+2}, v{r+2}, v{r+3}"); a(f"v_add_f32 v{r}, v{r}, v{r+2}")
    a("v_mul_f32 v13, v224, v32")
    for w in range(1, 4): a(f"v_fmac_f32 v13, v{224+4*w}, v{32+w}")
    for u in range(2):
        p = 200 + 8*u
        for i in range(4): a(f"v_permlane32_swap_b32 v{p+i}, v{p+4+i}")
        for i in range(4): a(f"v_add_f32 v{p+i}, v{p+i}, v{p+4+i}")
        a(f"buffer_store_dwordx4 v[{p}:{p+3}], v36, s[{WS}:{WS+3}], s{56+u} offen sc1")
    a("s_cmp_eq_u32 s52, 0")
    a("s_cbranch_scc1 L_CONS")
    a("s_cmp_lg_u32 s52, 1")
    a("s_cbranch_scc1 L_AUXEND")
    a("s_mov_b64 exec, 1")
    a(f"buffer_store_dwordx2 v[12:13], off, s[{WS}:{WS+3}], s58 sc1")
    a.label("L_AUXEND")
    stamp(11)
    stamp_flush(WS, 44, 45)
    a("s_endpgm")

    a.label("L_CONS")
    stamp(11)
    a(f"s_mov_b32 s70, {spin}")
    a.label("L_CPOLL")
    a.nop(2)
    for i in range(8): a(f"buffer_load_dwordx4 v[{192+4*i}:{195+4*i}], v38, s[{WS}:{WS+3}], s{64 + (i>>2)} offen offset:{1024*(i&3)} sc1")
    a(f"buffer_load_dwordx4 v[224:227], v39, s[{WS}:{WS+3}], s66 offen sc1")
    a("s_waitcnt vmcnt(0)")
    a("v_max3_u32 v12, v192, v193, v194")
    for k in range(195, 227, 2): a(f"v_max3_u32 v12, v12, v{k}, v{k+1}")
    a("v_max_u32 v12, v12, v227")
    a("v_cmp_eq_u32 vcc, -1, v12")
    a("s_cbranch_vccz L_CDONE")
    a("s_sub_u32 s70, s70, 1"); a("s_cmp_lg_u32 s70, 0")
    a("s_cbranch_scc1 L_CPOLL")
    a.label("L_CDONE")
    stamp(12)
    a("v_max_f32 v12, v224, v226")
    a("v_sub_f32 v13, v224, v12"); a("v_sub_f32 v14, v226, v12")
    a("v_exp_f32 v13, v13"); a("v_exp_f32 v14, v14")
    for e in range(8): a(f"v_add_f32 v{192+e}, v{192+e}, v{200+e}"); a(f"v_add_f32 v{208+e}, v{208+e}, v{216+e}")
    a("v_mul_f32 v15, v13, v225"); a("v_fmac_f32 v15, v14, v227"); a("v_rcp_f32 v15, v15")
    for e in range(4): a(f"v_add_f32 v{192+e}, v{192+e}, v{196+e}"); a(f"v_add_f32 v{208+e}, v{208+e}, v{212+e}")
    a("v_mul_f32 v13, v13, v15"); a("v_mul_f32 v14, v14, v15")
    for e in range(4): a(f"v_mul_f32 v{192+e}, v{192+e}, v13")
    for e in range(4): a(f"v_fmac_f32 v{192+e}, v{208+e}, v14")
    reduce4(192, 12)
    a("v_cvt_pk_bf16_f32 v12, v12, v12"); a("v_and_b32 v12, 0xffff0000, v12")
    a("v_mul_f32 v12, v12, v240"); a("v_cvt_pk_bf16_f32 v12, v12, v12"); a("v_and_b32 v12, 0xffff0000, v12")
    a("v_add_f32 v12, v12, v242"); a("v_cvt_pk_bf16_f32 v12, v12, v12")
    a("s_mov_b32 exec_lo, 0x00030003"); a("s_mov_b32 exec_hi, 0x00030003")
    a(f"buffer_store_short v12, v40, s[{OUT}:{OUT+3}], s67 offen")
    stamp(13)
    stamp_flush(WS, 44, 45)
    a.label("L_END")
    a("s_endpgm")
    emit_slow()

    a.raw('.section .rodata,"a"')
    a.raw(".p2align 6")
    a.raw(f".amdhsa_kernel {KN}_kernel")
    a.raw("  .amdhsa_next_free_vgpr 256")
    a.raw("  .amdhsa_next_free_sgpr 102")
    a.raw("  .amdhsa_accum_offset 256")
    a.raw("  .amdhsa_group_segment_fixed_size 0")
    a.raw("  .amdhsa_kernarg_size 112")
    a.raw("  .amdhsa_user_sgpr_count 2")
    a.raw("  .amdhsa_user_sgpr_kernarg_segment_ptr 1")
    a.raw("  .amdhsa_system_sgpr_workgroup_id_x 1")
    a.raw(".end_amdhsa_kernel")
    assert a.maxv <= 256 and a.maxs <= 102, (a.maxv, a.maxs)
    return a.text()

if __name__ == "__main__":
    import argparse
    ap = argparse.ArgumentParser()
    ap.add_argument("out")
    ap.add_argument("opts", nargs="*")
    args = ap.parse_args()
    kw = {}
    for o in args.opts:
        k, v = o.split("=")
        try: v = eval(v)
        except Exception: pass
        kw[k] = v
    open(args.out, "w").write(gen(**kw))
```

```python
import struct, sys
from asmlib import Asm
KN = "gated_mix__mha_block_cached__sliding_block_cached__decode"

def f32(x): return "0x%08x" % struct.unpack("<I", struct.pack("<f", x))[0]
LOG2E = 1.4426950408889634
SCALE = 128 ** -0.5

YA, YB, QB, PB, PBL, CTR, STAMP = 0x000000, 0x200000, 0x280000, 0x300000, 0x380000, 0x390000, 0x1000000
L_RQ, L_CTL, L_QP, L_QBF, L_QBB, L_REG, RS = 0, 4096, 5120, 13312, 14336, 15360, 2176
L_TC, L_SYNC = L_CTL + 32, L_CTL + 48
R_M, R_L = 2048, 2064
L_BO, L_BM, L_BL = 24064, 32256, 32320
LDS_BYTES = 32768
F_VALID, F_ISB, F_END = 1, 0x40, 0x80
ENDDESC = 0xF0000000 | F_VALID | F_END

HEADER = open("cdna_kernels/" + KN + ".s.ref").read().split("; Override launch")[0]

def gen(D=4, mimic=True, stamps=False, spin=100000, lds=LDS_BYTES, ntkv="nt", ntw="", prio=3, psleep=64,
        BPOS=2, SB=4, SA=12, PD=3, LEAD=4, CHK0=16, WOR=(6,6,22,6), WOS=16, WOM=15, S3D=8, YBR=58, chk='load', nos1=False, noclear=False, nowo=False, s1nt='nt', clrf='sc1', nopoll=0, noatom=0, nopub=False, pat=0, hmap=0, nogather=False, noq2=False):
    HS, JS, PSH = ((21, 18, 26), (23, 20, 18), (23, 18, 21), (20, 25, 18))[pat]
    a = Asm()
    CS = LOG2E if mimic else LOG2E * SCALE
    PB_N, PA_N = 32 - 8*SB, 128 - 8*SA
    assert 1 <= SB <= 4 and 1 <= SA <= 16 and LEAD >= PD
    a.raw(HEADER.rstrip("\n"))
    a.raw(f"; @launch grid=(256,1,1) block=(512,1,1) lds={lds}")
    a.raw('.amdgcn_target "amdgcn-amd-amdhsa--gfx950"')
    a.raw(".text")
    a.raw(f".globl {KN}_kernel")
    a.raw(".p2align 8")
    a.raw(f".type {KN}_kernel,@function")
    a.raw(f"{KN}_kernel:")
    WS = 24
    VST = 3
    DP = "row_mask:0xf bank_mask:0xf"

    def stamp(idx):
        if not stamps: return
        a("s_memrealtime s[96:97]")
        a("s_waitcnt lgkmcnt(0)")
        a(f"v_writelane_b32 v{VST}, s96, {idx}")
    def stamp_init():
        if stamps: a(f"v_mov_b32 v{VST}, 0")
    def stamp_flush(vt2):
        if not stamps: return
        a("s_mov_b64 exec, -1")
        a(f"v_lshlrev_b32 v{vt2}, 2, v0")
        a("s_lshl_b32 s96, s2, 3"); a("s_add_u32 s96, s96, s3"); a("s_lshl_b32 s96, s96, 6"); a(f"s_add_u32 s96, s96, {STAMP}")
        a("s_mov_b64 exec, 0xffff")
        a(f"buffer_store_dword v{VST}, v{vt2}, s[{WS}:{WS+3}], s96 offen")

    def selectors(tmp):
        a(f"v_and_b32 v{tmp}, 1, v0")
        a(f"v_cmp_eq_u32 vcc, 1, v{tmp}")
        a(f"v_mov_b32 v{tmp+1}, 0x0c0c0100"); a(f"v_mov_b32 v{tmp+2}, 0x01000c0c")
        a(f"v_cndmask_b32 v{tmp+1}, v{tmp+1}, v{tmp+2}, vcc")
        a(f"v_mov_b32 v{tmp+2}, 0x0c0c0302"); a(f"v_mov_b32 v{tmp+3}, 0x03020c0c")
        a(f"v_cndmask_b32 v{tmp+2}, v{tmp+2}, v{tmp+3}, vcc")
        a(f"v_bfe_u32 v{tmp}, v0, 1, 2")
        a(f"v_mov_b32 v{tmp+3}, 0x0c0c0c0c")
        for r in range(4):
            a(f"v_cmp_eq_u32 vcc, {r}, v{tmp}")
            a(f"v_cndmask_b32 v{4+r}, v{tmp+3}, v{tmp+1}, vcc")
            a(f"v_cndmask_b32 v{8+r}, v{tmp+3}, v{tmp+2}, vcc")

    def diag(dst, src, half):
        for r in range(4):
            a(f"v_perm_b32 v{dst+r}, v{src}, v{src}, v{(8 if half else 4)+r}")

    def mfma(d, A, B, c):
        cs = "0" if c is None else f"v[{c}:{c+3}]"
        a(f"v_mfma_f32_16x16x32_bf16 v[{d}:{d+3}], v[{A}:{A+3}], v[{B}:{B+3}], {cs}")

    R = dict(Q=[12, 192], S=[28, 32], PK=[36, 208], T=[38, 210], M=[39, 211], NM=[40, 212], L=[41, 213], O=[60, 216], AOP=44, U=42)
    vRQ, vPO, vPM, vPL, vMASK, vQ, vT, vD, vBO, vBM, vBL, vFOUR, vCNT, vQB, vZ = 43, 220, 221, 222, 223, 224, 225, 226, 227, 228, 229, 230, 231, 232, 233
    SL = 64
    def sK(d): return SL + 32*d
    def sV(d): return SL + 32*d + 16
    def iK(d):
        for i in range(4): a(f"buffer_load_dwordx4 v[{sK(d)+4*i}:{sK(d)+4*i+3}], v1, s[12:15], s20 offen offset:{64*i} {ntkv}")
    def iV(d):
        for j in range(4): a(f"buffer_load_dwordx4 v[{sV(d)+4*j}:{sV(d)+4*j+3}], v2, s[16:19], s20 offen offset:{256*j} {ntkv}")

    slow_paths, spin_paths = [], []
    def tile(ns, d):
        K, V = sK(d), sV(d)
        wait = (2*D-1)*4
        ty = "AB"[ns-1]
        a.label(f"L_{ty}{d}")
        a(f"s_xor_b32 s22, s{40+d}, s45"); a("s_and_b32 s22, s22, 0xf0")
        a(f"s_cbranch_scc1 L_PHS{d}")
        a.label(f"L_{ty}{d}G")
        a("s_mov_b64 exec, 1")
        a(f"ds_read_b32 v{vD}, v{vRQ}")
        a(f"ds_add_rtn_u32 v{vT}, v{vZ}, v{vFOUR} offset:{L_TC}")
        a("s_mov_b64 exec, -1")
        a("s_add_u32 s47, s47, 1")
        a(f"s_waitcnt vmcnt({wait})")
        for i in range(4):
            for s in range(ns):
                mfma(R["S"][s], K + 4*i, R["Q"][s] + 4*i, None if i == 0 else R["S"][s])
        a("s_waitcnt lgkmcnt(0)")
        a.label(f"L_{ty}{d}C")
        a(f"v_readfirstlane_b32 s{40+d}, v{vD}")
        a(f"s_bitcmp1_b32 s{40+d}, 0")
        a(f"s_cbranch_scc0 L_SP{ty}{d}")
        spin_paths.append((ty, d))
        a(f"s_and_b32 s20, s{40+d}, 0xfffff000")
        a(f"s_bitcmp1_b32 s{40+d}, 6")
        a("s_cselect_b64 s[12:13], s[32:33], s[28:29]")
        a("s_cselect_b64 s[16:17], s[34:35], s[30:31]")
        a("s_cselect_b32 s14, s37, s36")
        a("s_cselect_b32 s18, s37, s36")
        a(f"v_mov_b32 v{vRQ}, v{vT}")
        iK(d)
        if mimic:
            for s in range(ns):
                S, PK = R["S"][s], R["PK"][s]
                a(f"v_cvt_pk_bf16_f32 v{PK}, v{S}, v{S+1}"); a(f"v_cvt_pk_bf16_f32 v{PK+1}, v{S+2}, v{S+3}")
                a(f"v_lshlrev_b32 v{S}, 16, v{PK}"); a(f"v_and_b32 v{S+1}, 0xffff0000, v{PK}")
                a(f"v_lshlrev_b32 v{S+2}, 16, v{PK+1}"); a(f"v_and_b32 v{S+3}, 0xffff0000, v{PK+1}")
                for i in range(4): a(f"v_mul_f32 v{S+i}, {f32(SCALE)}, v{S+i}")
                a(f"v_cvt_pk_bf16_f32 v{PK}, v{S}, v{S+1}"); a(f"v_cvt_pk_bf16_f32 v{PK+1}, v{S+2}, v{S+3}")
                a(f"v_lshlrev_b32 v{S}, 16, v{PK}"); a(f"v_and_b32 v{S+1}, 0xffff0000, v{PK}")
                a(f"v_lshlrev_b32 v{S+2}, 16, v{PK+1}"); a(f"v_and_b32 v{S+3}, 0xffff0000, v{PK+1}")
        for s in range(ns):
            S, T = R["S"][s], R["T"][s]
            a(f"v_max3_f32 v{T}, v{S}, v{S+1}, v{S+2}")
            a(f"v_max_f32 v{T}, v{T}, v{S+3}")
        a(f"v_cmp_gt_f32 vcc, v{R['T'][0]}, v{R['M'][0]}")
        if ns == 2:
            a(f"v_cmp_gt_f32 s[76:77], v{R['T'][1]}, v{R['M'][1]}")
            a("s_or_b64 vcc, vcc, s[76:77]")
        ls, lb = a.newlabel("SLOW"), a.newlabel("BACK")
        a(f"s_cbranch_vccnz {ls}")
        a.label(lb)
        slow_paths.append((ls, lb, ns))
        for s in range(ns):
            S = R["S"][s]
            for i in range(4): a(f"v_fma_f32 v{S+i}, v{S+i}, s75, v{R['NM'][s]}")
            for i in range(4): a(f"v_exp_f32 v{S+i}, v{S+i}")
        for s in range(ns):
            S, PK, L, T = R["S"][s], R["PK"][s], R["L"][s], R["T"][s]
            a(f"v_cvt_pk_bf16_f32 v{PK}, v{S}, v{S+1}"); a(f"v_cvt_pk_bf16_f32 v{PK+1}, v{S+2}, v{S+3}")
            a(f"v_add_f32 v{T}, v{S}, v{S+1}"); a(f"v_add_f32 v{S+2}, v{S+2}, v{S+3}")
            a(f"v_add_f32 v{T}, v{T}, v{S+2}"); a(f"v_add_f32 v{L}, v{L}, v{T}")
        first = True
        for s in range(ns):
            for j in range(4): diag(R["AOP"] + 4*j, R["PK"][s] + (j >> 1), j & 1)
            if first: a(f"s_waitcnt vmcnt({wait})"); first = False
            for j in range(4): mfma(R["O"][s], R["AOP"] + 4*j, V + 4*j, R["O"][s])
        iV(d)

    def emit_slow():
        for ls, lb, ns in slow_paths:
            a.label(ls)
            a.nop(8)
            U = R["U"]
            for s in range(ns):
                T, M, NM, L, O = R["T"][s], R["M"][s], R["NM"][s], R["L"][s], R["O"][s]
                a(f"v_mov_b32 v{U}, v{T}"); a(f"v_permlane16_swap_b32 v{T}, v{U}"); a(f"v_max_f32 v{T}, v{T}, v{U}")
                a(f"v_mov_b32 v{U}, v{T}"); a(f"v_permlane32_swap_b32 v{T}, v{U}"); a(f"v_max3_f32 v{T}, v{T}, v{U}, v{M}")
                a(f"v_sub_f32 v{U}, v{M}, v{T}"); a(f"v_mul_f32 v{U}, s75, v{U}"); a(f"v_exp_f32 v{U}, v{U}")
                a(f"v_mov_b32 v{M}, v{T}")
                a(f"v_mul_f32 v{NM}, s74, v{T}")
                a(f"v_mul_f32 v{L}, v{L}, v{U}")
                if ns == 2:
                    a(f"v_readlane_b32 s76, v{U}, 0"); a(f"v_readlane_b32 s77, v{U}, 8")
                    a(f"v_mov_b32 v{U}, s76"); a(f"v_mov_b32 v{T}, s77")
                    a(f"v_cndmask_b32 v{U}, v{U}, v{T}, s[72:73]")
                for i in range(4): a(f"v_mul_f32 v{O+i}, v{O+i}, v{U}")
            a.settle()
            a(f"s_branch {lb}")
        slow_paths.clear()
        for ty, d in spin_paths:
            a.label(f"L_SP{ty}{d}")
            a("s_sleep 1")
            a("s_mov_b64 exec, 1")
            a(f"ds_read_b32 v{vD}, v{vRQ}")
            a("s_mov_b64 exec, -1")
            a("s_sub_u32 s70, s70, 1")
            a("s_waitcnt lgkmcnt(0)")
            a(f"s_cbranch_scc0 L_{ty}{d}C")
            a(f"v_mov_b32 v{vD}, {hex(ENDDESC)}")
            a("s_mov_b32 s70, 0")
            a.nop(2)
            a(f"s_branch L_{ty}{d}C")
        spin_paths.clear()

    def attn_init(ns):
        for s in range(ns):
            a(f"v_mov_b32 v{R['M'][s]}, {f32(-3.0e38)}"); a(f"v_mov_b32 v{R['NM'][s]}, {f32(3.0e38*CS if 3.0e38*CS < 3.4e38 else 3.0e38)}"); a(f"v_mov_b32 v{R['L'][s]}, 0")
            for i in range(4): a(f"v_mov_b32 v{R['O'][s]+i}, 0")

    a("s_cmp_ge_u32 s2, 256")
    a("s_cbranch_scc1 L_END")
    a("s_load_dwordx4 s[28:31], s[0:1], 8")
    a("v_lshrrev_b32 v1, 6, v0")
    a("v_and_b32 v0, 63, v0")
    a("s_and_b32 s4, s2, 7")
    a("v_readfirstlane_b32 s3, v1")
    a("s_lshr_b32 s5, s2, 3")
    a("s_lshr_b32 s7, s4, 1"); a("s_xor_b32 s6, s4, s7"); a("s_and_b32 s6, s6, 1"); a("s_lshl_b32 s6, s6, 4")
    a("s_lshr_b32 s8, s5, 1"); a("s_add_u32 s6, s6, s8")
    a("s_lshl_b32 s7, s7, 1"); a("s_and_b32 s8, s5, 1"); a("s_add_u32 s7, s7, s8")
    if hmap == 1:
        a("s_lshr_b32 s6, s4, 1"); a("s_lshl_b32 s6, s6, 3"); a("s_lshr_b32 s7, s5, 2"); a("s_add_u32 s6, s6, s7")
        a("s_and_b32 s7, s4, 1"); a("s_lshl_b32 s7, s7, 2"); a("s_and_b32 s8, s5, 3"); a("s_add_u32 s7, s7, s8")
    a(f"s_lshl_b32 s20, s6, {HS}"); a(f"s_lshl_b32 s8, s7, {JS}"); a("s_add_u32 s20, s20, s8")
    a("s_cmp_ge_u32 s3, 4")
    a("s_cbranch_scc1 L_AUX")

    a("s_load_dwordx4 s[32:35], s[0:1], 48")
    a("v_and_b32 v3, 15, v0"); a("v_lshrrev_b32 v43, 4, v0")
    a("s_lshl_b32 s21, s3, 12")
    a("s_add_u32 s20, s20, s21")
    a("v_lshlrev_b32 v1, 8, v3"); a("v_lshl_add_u32 v1, v43, 4, v1")
    a("v_lshlrev_b32 v2, 4, v3"); a("v_lshl_add_u32 v2, v43, 10, v2")
    a("s_mov_b32 s36, 0x10000000"); a("s_mov_b32 s37, 0x4000000")
    a("s_mov_b32 s14, s36"); a("s_mov_b32 s18, s36")
    a("s_mov_b32 s15, 0x20000"); a("s_mov_b32 s19, 0x20000")
    a("s_waitcnt lgkmcnt(0)")
    a("s_mov_b64 s[12:13], s[28:29]"); a("s_mov_b64 s[16:17], s[30:31]")
    for d in range(D):
        iK(d); iV(d)
        a("s_add_u32 s20, s20, 0x4000")
        a(f"s_mov_b32 s{40+d}, {F_VALID}")
    stamp_init(); stamp(0)
    if stamps:
        a(f"s_load_dwordx2 s[{WS}:{WS+1}], s[0:1], 104"); a(f"s_mov_b32 s{WS+2}, 0x40000000"); a(f"s_mov_b32 s{WS+3}, 0x20000")
        a("s_mov_b32 m0, 2")
    a(f"s_mov_b32 s75, {f32(CS)}"); a(f"s_mov_b32 s74, {f32(-CS)}")
    a("s_mov_b32 s72, 0"); a("s_mov_b32 s73, -1")
    a(f"s_mov_b32 s70, {spin*16}"); a("s_mov_b32 s45, 0"); a("s_mov_b32 s47, 0"); a("s_mov_b32 s48, 0"); a("s_mov_b32 s49, 0")
    a("s_mov_b32 s78, 0x07060302")
    selectors(28)
    attn_init(1)
    a("v_and_b32 v34, 15, v0"); a("v_lshrrev_b32 v35, 4, v0"); a("v_and_b32 v36, 1, v35"); a("v_lshrrev_b32 v37, 5, v0")
    a("v_lshlrev_b32 v38, 5, v34"); a("v_lshl_add_u32 v38, v36, 4, v38")
    a("v_lshl_add_u32 v32, v37, 9, v38")
    a("v_lshrrev_b32 v33, 1, v32")
    a(f"v_lshlrev_b32 v{vQ}, 4, v35")
    a("s_lshl_b32 s21, s3, 11"); a(f"v_add_u32 v{vBO}, s21, v32")
    a(f"v_lshrrev_b32 v{vPO}, 1, v38"); a(f"v_lshl_add_u32 v{vPO}, v37, 10, v{vPO}")
    a("s_lshl_b32 s21, s3, 8"); a(f"s_add_u32 s21, s21, {L_REG}"); a(f"v_add_u32 v{vPO}, s21, v{vPO}")
    a("s_lshl_b32 s21, s3, 2"); a(f"s_add_u32 s22, s21, {L_REG + R_M}"); a(f"v_mov_b32 v{vPM}, s22")
    a(f"s_add_u32 s22, s21, {L_RQ + 16*D}"); a(f"v_mov_b32 v{vRQ}, s22")
    a("v_lshrrev_b32 v34, 3, v34")
    a(f"v_lshlrev_b32 v{vBM}, 4, v34"); a(f"v_add_u32 v{vBM}, s21, v{vBM}")
    a(f"v_lshl_add_u32 v{vQB}, v34, 8, v{vQ}")
    a("s_lshl_b32 s21, s3, 4")
    a(f"v_lshlrev_b32 v{vBL}, 2, v35"); a(f"v_add_u32 v{vBL}, s21, v{vBL}")
    a(f"v_add_u32 v{vPL}, {L_REG + R_L}, v{vBL}")
    a(f"v_lshl_add_u32 v{vBL}, v34, 6, v{vBL}")
    a(f"v_mul_u32_u24 v{vMASK}, 0xffff, v37"); a(f"v_lshlrev_b32 v{vMASK}, 16, v{vMASK}")
    a(f"v_mov_b32 v{vFOUR}, 4"); a(f"v_mov_b32 v{vCNT}, {L_CTL}"); a(f"v_mov_b32 v{vZ}, 0")
    a("s_barrier")
    for w in range(4): a(f"ds_read_b128 v[{44+4*w}:{47+4*w}], v32 offset:{L_QP + 2048*w}")
    a("s_waitcnt lgkmcnt(0)")
    for i in range(4):
        a(f"v_add_f32 v{44+i}, v{44+i}, v{48+i}"); a(f"v_add_f32 v{52+i}, v{52+i}, v{56+i}")
    for i in range(4): a(f"v_add_f32 v{44+i}, v{44+i}, v{52+i}")
    a("v_cvt_pk_bf16_f32 v48, v44, v45"); a("v_cvt_pk_bf16_f32 v49, v46, v47")
    a(f"ds_write_b64 v33, v[48:49] offset:{L_QBF}")
    for i in range(4): a(f"ds_read_b128 v[{12+4*i}:{15+4*i}], v{vQ} offset:{L_QBF + 64*i}")
    a("s_waitcnt lgkmcnt(0)")
    stamp(1)
    for d in range(D): tile(1, d)
    a("s_branch L_A0")
    for d in range(D): tile(2, d)
    a("s_branch L_B0")
    for d in range(D):
        a.label(f"L_PHS{d}")
        a(f"s_mov_b32 s44, {d}"); a(f"s_mov_b32 s46, s{40+d}")
        if d < D - 1: a("s_branch L_PH")
    a.label("L_PH")
    O, M, L = R["O"], R["M"], R["L"]
    a(f"v_mov_b32 v{vD}, s47")
    if stamps: a("s_add_u32 s49, s49, s47")
    a("s_bitcmp1_b32 s45, 6")
    a("s_cbranch_scc1 L_PHB")
    a(f"ds_write_b32 v{vPL}, v{L[0]}")
    a(f"ds_write_b32 v{vPM}, v{M[0]}")
    a.nop(4)
    for i in range(4): a(f"v_and_b32 v{44+i}, v{O[0]+i}, v{vMASK}")
    for i in range(4): a(f"v_sub_f32 v{44+i}, v{O[0]+i}, v{44+i}")
    a("v_perm_b32 v44, v45, v44, s78"); a("v_perm_b32 v45, v47, v46, s78")
    a(f"ds_write_b64 v{vPO}, v[44:45]")
    a(f"ds_add_u32 v{vCNT}, v{vD}")
    a("s_branch L_PHN")
    a.label("L_PHB")
    for t in range(2):
        a(f"ds_write_b32 v{vBL}, v{L[t]} offset:{L_BL + 128*t}")
        a(f"ds_write_b32 v{vBM}, v{M[t]} offset:{L_BM + 32*t}")
    a.nop(4)
    for t in range(2): a(f"ds_write_b128 v{vBO}, v[{O[t]}:{O[t]+3}] offset:{L_BO + 1024*t}")
    a(f"ds_add_u32 v{vZ}, v{vD} offset:{L_CTL + 16}")
    a.label("L_PHN")
    a("s_bitcmp1_b32 s46, 7")
    a("s_cbranch_scc1 L_FIN")
    if stamps:
        stamp("m0"); a("s_add_u32 m0, m0, 1")
    a("s_and_b32 s45, s46, 0xf0"); a("s_mov_b32 s47, 0")
    a("s_bitcmp1_b32 s46, 6")
    a("s_cbranch_scc1 L_PHQB")
    a("s_bfe_u32 s22, s46, 0x20004"); a("s_sub_u32 s23, s22, s48"); a("s_mov_b32 s48, s22")
    a("s_lshl_b32 s22, s23, 8"); a(f"v_add_u32 v{vQ}, s22, v{vQ}")
    for i in range(4): a(f"ds_read_b128 v[{12+4*i}:{15+4*i}], v{vQ} offset:{L_QBF + 64*i}")
    a(f"s_mul_i32 s22, s23, {RS}")
    for r in (vPO, vPM, vPL): a(f"v_add_u32 v{r}, s22, v{r}")
    a("s_lshl_b32 s22, s23, 2"); a(f"v_add_u32 v{vCNT}, s22, v{vCNT}")
    a("s_waitcnt lgkmcnt(0)")
    attn_init(1)
    for d in range(D - 1):
        a(f"s_cmp_eq_u32 s44, {d}"); a(f"s_cbranch_scc1 L_A{d}G")
    a(f"s_branch L_A{D-1}G")
    a.label("L_PHQB")
    for t in range(2):
        for i in range(4): a(f"ds_read_b128 v[{R['Q'][t]+4*i}:{R['Q'][t]+3+4*i}], v{vQB} offset:{L_QBB + 512*t + 64*i}")
    a("s_waitcnt lgkmcnt(0)")
    attn_init(2)
    for d in range(D - 1):
        a(f"s_cmp_eq_u32 s44, {d}"); a(f"s_cbranch_scc1 L_B{d}G")
    a(f"s_branch L_B{D-1}G")
    a.label("L_FIN")
    a("s_waitcnt lgkmcnt(0)")
    stamp(8)
    a("s_barrier")
    if stamps:
        stamp(9)
        a(f"v_readlane_b32 s97, v{VST}, 0"); a("s_mul_i32 s96, s49, 100"); a("s_add_u32 s96, s96, s97"); a(f"v_writelane_b32 v{VST}, s96, 15")
    stamp_flush(44)
    a("s_endpgm")
    emit_slow()

    a.label("L_AUX")
    if prio: a(f"s_setprio {prio}")
    X, WQ, WO, DBG, WQB, WOB, GW, OUT = 8, 12, 16, 28, 32, 36, 40, 44
    AW = 56
    a("s_waitcnt lgkmcnt(0)")
    for srd, off in ((X, 0), (WQ, 24), (WO, 32), (WS, 104), (DBG, 96), (WQB, 64), (WOB, 72), (GW, 80), (OUT, 88)):
        a(f"s_load_dwordx2 s[{srd}:{srd+1}], s[0:1], {off}")
    for srd, n in ((X, 4096), (WQ, 0x400000), (WO, 0x400000), (WS, 0x40000000), (DBG, 256), (WQB, 0x400000), (WOB, 0x400000), (GW, 1024), (OUT, 4096)):
        a(f"s_mov_b32 s{srd+2}, {hex(n)}"); a(f"s_mov_b32 s{srd+3}, 0x20000")
    a(f"s_sub_u32 s{AW}, s3, 4")
    a("v_and_b32 v1, 15, v0"); a("v_lshrrev_b32 v2, 4, v0")
    a("v_lshlrev_b32 v60, 4, v1"); a("v_lshl_add_u32 v60, v2, 18, v60")
    a("v_lshrrev_b32 v61, 3, v1"); a("v_lshlrev_b32 v61, 10, v61"); a("v_lshl_add_u32 v61, v2, 6, v61")
    a(f"s_lshl_b32 s57, s{AW}, 20"); a("s_lshl_b32 s58, s6, 8"); a("s_add_u32 s57, s57, s58")
    a(f"s_lshl_b32 s58, s{AW}, 8")
    W = 64
    a("s_waitcnt lgkmcnt(0)")
    for i in range(4): a(f"buffer_load_dwordx4 v[{12+4*i}:{15+4*i}], v61, s[{X}:{X+3}], s58 offen offset:{16*i}")
    for j in range(32):
        a(f"buffer_load_dwordx4 v[{W+4*j}:{W+4*j+3}], v60, s[{WQ}:{WQ+3}], s57 offen {ntw}")
        if j < 31: a("s_add_u32 s57, s57, 0x2000")
    for i in range(4): a(f"buffer_load_dwordx4 v[{28+4*i}:{31+4*i}], v61, s[{X}:{X+3}], s58 offen offset:{2048+16*i}")
    stamp_init(); stamp(0)
    a(f"s_mov_b32 s75, {f32(CS)}")
    selectors(44)
    a("s_and_b32 s59, s4, 6"); a("s_add_u32 s59, s59, s5"); a("s_and_b32 s59, s59, 31")
    a("s_lshl_b32 s21, s59, 21"); a("s_add_u32 s21, s21, 0x180000")
    for i in range(4): a(f"v_mov_b32 v{44+i}, 0")
    a("v_lshlrev_b32 v48, 4, v0")
    a(f"s_cmp_eq_u32 s{AW}, 2")
    a("s_cbranch_scc1 L_NEUT")
    a(f"s_cmp_lg_u32 s{AW}, 3")
    a("s_cbranch_scc1 L_NORQ")
    for i in range(5): a(f"ds_write_b128 v48, v[44:47] offset:{L_RQ + 1024*i}")
    a(f"v_lshlrev_b32 v44, {PSH}, v2"); a("v_lshl_add_u32 v44, v1, 14, v44"); a("v_add_u32 v44, s20, v44")
    a("v_lshl_add_u32 v44, v2, 4, v44"); a(f"v_or_b32 v44, {F_VALID}, v44")
    for i in range(1, 4): a(f"v_add_u32 v{44+i}, {0x1000*i}, v44")
    a(f"v_mov_b32 v49, {L_RQ + 16*(D+1)}")
    a("s_mov_b32 exec_hi, 0")
    a(f"ds_write_b128 v48, v[44:47] offset:{L_RQ}")
    a("s_mov_b64 exec, 1")
    a(f"ds_write_b32 v48, v49 offset:{L_TC}")
    a("s_mov_b64 exec, -1")
    a("s_branch L_NORQ")
    a.label("L_NEUT")
    for i in range((LDS_BYTES - L_REG) // 1024): a(f"ds_write_b128 v48, v[44:47] offset:{L_REG + 1024*i}")
    a("v_lshrrev_b32 v49, 2, v1"); a(f"v_mul_u32_u24 v49, {RS}, v49"); a("v_and_b32 v50, 3, v0"); a("v_lshl_add_u32 v49, v50, 2, v49")
    a("v_lshlrev_b32 v50, 2, v1")
    a(f"v_mov_b32 v44, {f32(-3.0e38)}")
    a(f"ds_write_b32 v49, v44 offset:{L_REG + R_M}")
    a(f"ds_write_b32 v50, v44 offset:{L_BM}")
    a.label("L_NORQ")
    a("v_and_b32 v62, 1, v2"); a("v_lshlrev_b32 v62, 4, v62"); a("v_lshl_add_u32 v62, v1, 5, v62")
    a("v_lshrrev_b32 v63, 5, v0"); a("v_lshl_add_u32 v62, v63, 9, v62")
    a(f"s_lshl_b32 s60, s{AW}, 11"); a("v_add_u32 v63, s60, v62")
    ACQ = 192
    def wq_chain(t):
        for j in range(32):
            ao = 44 + 4*(j & 3)
            if j == 0: a(f"s_waitcnt vmcnt({36 if t == 0 else 0})")
            diag(ao, 12 + 16*t + (j >> 1), j & 1)
            if t == 0: a(f"s_waitcnt vmcnt({35-j})")
            mfma(ACQ + 4*t, ao, W + 4*j, None if j == 0 else ACQ + 4*t)
        a(f"ds_write_b128 v63, v[{ACQ+4*t}:{ACQ+4*t+3}] offset:{L_QP + 1024*t}")
    wq_chain(0)
    a("s_waitcnt lgkmcnt(0)")
    a("s_barrier")
    stamp(1)
    if noq2: a("s_waitcnt vmcnt(0)")
    else: wq_chain(1)
    a("v_mov_b32 v60, 1"); a("v_mov_b32 v61, 0")
    a(f"ds_add_u32 v61, v60 offset:{L_SYNC}")

    def lds_wait(off, target, sl=4):
        l, ld = a.newlabel("LW"), a.newlabel("LWD")
        a(f"s_mov_b32 s70, {spin*16}")
        a.label(l)
        if isinstance(off, int): a(f"ds_read_b32 v59, v61 offset:{off}")
        else: a(f"ds_read_b32 v59, {off}")
        a("s_waitcnt lgkmcnt(0)")
        a("v_readfirstlane_b32 s71, v59")
        a(f"s_cmp_ge_u32 s71, {target}")
        a(f"s_cbranch_scc1 {ld}")
        a(f"s_sleep {sl}")
        a("s_sub_u32 s70, s70, 1"); a("s_cmp_lg_u32 s70, 0")
        a(f"s_cbranch_scc1 {l}")
        a.label(ld)
    def atomic_inc(srd, soff, imm=0):
        if (noatom & 1 and srd == DBG) or (noatom & 2 and srd != DBG): return
        a("s_mov_b64 exec, 1")
        a(f"buffer_atomic_add v60, off, s[{srd}:{srd+3}], {soff} offset:{imm} sc1")
        a("s_mov_b64 exec, -1")
    def gpoll(srd, soff, target):
        if (nopoll & 1 and srd == DBG) or (nopoll & 2 and srd != DBG): a("s_waitcnt vmcnt(0)"); return
        l, ld = a.newlabel("GP"), a.newlabel("GPD")
        a(f"s_mov_b32 s70, {spin}")
        a.label(l)
        a("s_mov_b64 exec, 1")
        if chk == 'load': a(f"buffer_load_dword v59, off, s[{srd}:{srd+3}], {soff} sc0 sc1")
        else:
            a("v_mov_b32 v59, 0")
            a(f"buffer_atomic_add v59, off, s[{srd}:{srd+3}], {soff} sc0 sc1")
        a("s_mov_b64 exec, -1")
        a("s_waitcnt vmcnt(0)")
        a("v_readfirstlane_b32 s71, v59")
        a(f"s_cmp_ge_u32 s71, {target}")
        a(f"s_cbranch_scc1 {ld}")
        for _ in range((psleep + 126) // 127): a(f"s_sleep {min(psleep, 127)}")
        a("s_sub_u32 s70, s70, 1"); a("s_cmp_lg_u32 s70, 0")
        a(f"s_cbranch_scc1 {l}")
        a.label(ld)

    a(f"s_cmp_eq_u32 s{AW}, 1"); a("s_cbranch_scc1 L_S1")
    a(f"s_cmp_eq_u32 s{AW}, 2"); a("s_cbranch_scc1 L_QF")
    a(f"s_cmp_eq_u32 s{AW}, 3"); a("s_cbranch_scc1 L_WO")
    for i in range(4): a(f"v_mov_b32 v{44+i}, -1")
    a("v_lshlrev_b32 v48, 4, v0")
    a("s_lshl_b32 s60, s2, 13")
    if YA: a(f"s_add_u32 s60, s60, {YA}")
    a("s_add_u32 s61, s60, 0x1000")
    for i in range(0 if noclear else 8): a(f"buffer_store_dwordx4 v[44:47], v48, s[{WS}:{WS+3}], s{60 + (i>>2)} offen offset:{1024*(i&3)} {clrf}")
    a("s_lshl_b32 s60, s2, 8"); a(f"s_add_u32 s60, s60, {CTR}")
    a("s_mov_b64 exec, 1")
    a(f"buffer_store_dword v61, off, s[{WS}:{WS+3}], s60 sc1")
    a("s_mov_b64 exec, -1")
    a("s_lshr_b32 s60, s2, 6"); a("s_lshl_b32 s60, s60, 10")
    a(f"buffer_load_dwordx4 v[12:15], v48, s[{X}:{X+3}], s60 offen")
    a(f"buffer_load_dwordx4 v[16:19], v48, s[{GW}:{GW+3}], 0 offen")
    a("s_waitcnt vmcnt(0)")
    atomic_inc(DBG, 0)
    for i in range(4):
        a(f"v_lshlrev_b32 v20, 16, v{12+i}"); a(f"v_and_b32 v21, 0xffff0000, v{12+i}")
        a(f"v_lshlrev_b32 v22, 16, v{16+i}"); a(f"v_and_b32 v23, 0xffff0000, v{16+i}")
        a("v_mul_f32 v20, v20, v22"); a("v_mul_f32 v21, v21, v23")
        a("v_cvt_pk_bf16_f32 v20, v20, v21")
        a("v_lshlrev_b32 v21, 16, v20"); a("v_and_b32 v20, 0xffff0000, v20")
        if i == 0: a("v_add_f32 v24, v20, v21")
        else: a("v_add_f32 v24, v24, v20"); a("v_add_f32 v24, v24, v21")
    for r in (1, 2, 4, 8): a(f"v_add_f32_dpp v24, v24, v24 row_ror:{r} {DP}")
    a("v_mov_b32 v25, v24"); a("v_permlane16_swap_b32 v24, v25"); a("v_add_f32 v24, v24, v25")
    a("v_mov_b32 v25, v24"); a("v_permlane32_swap_b32 v24, v25"); a("v_add_f32 v24, v24, v25")
    a("v_cvt_pk_bf16_f32 v24, v24, v24"); a("v_and_b32 v24, 0xffff0000, v24")
    a(f"v_mul_f32 v24, {f32(-LOG2E)}, v24"); a("v_exp_f32 v24, v24"); a("v_add_f32 v24, 1.0, v24"); a("v_rcp_f32 v24, v24")
    a("v_cvt_pk_bf16_f32 v24, v24, v24"); a("v_and_b32 v62, 0xffff0000, v24")
    a("v_sub_f32 v24, 1.0, v62"); a("v_cvt_pk_bf16_f32 v24, v24, v24"); a("v_and_b32 v63, 0xffff0000, v24")
    a.settle()
    a("s_branch L_WO")

    a.label("L_S1")
    if nos1 == 2: a("s_branch L_WO")
    RW = 192
    a("v_lshlrev_b32 v52, 4, v1"); a("v_lshl_add_u32 v52, v2, 17, v52")
    a("v_lshrrev_b32 v53, 3, v1"); a("v_lshlrev_b32 v53, 10, v53"); a("v_lshl_add_u32 v53, v2, 5, v53")
    a("s_lshl_b32 s60, s4, 19"); a("s_lshl_b32 s61, s5, 8"); a("s_add_u32 s60, s60, s61")
    a("s_lshl_b32 s61, s4, 7")
    a("s_waitcnt lgkmcnt(0)")
    for t in range(2):
        for i in range(2): a(f"buffer_load_dwordx4 v[{12+8*t+4*i}:{15+8*t+4*i}], v53, s[{X}:{X+3}], s61 offen offset:{2048*t+16*i}")
    for j in range(16):
        a(f"buffer_load_dwordx4 v[{RW+4*j}:{RW+4*j+3}], v52, s[{WQB}:{WQB+3}], s60 offen {s1nt}")
        if j < 15 and not nos1: a("s_add_u32 s60, s60, 0x2000")
    for j in range(16):
        if j == 0: a("s_waitcnt vmcnt(16)")
        for t in range(2): diag(28 + 8*(j & 1) + 4*t, 12 + 8*t + (j >> 1), j & 1)
        a(f"s_waitcnt vmcnt({15-j})")
        for t in range(2): mfma(44 + 4*t, 28 + 8*(j & 1) + 4*t, RW + 4*j, None if j == 0 else 44 + 4*t)
    a("s_lshl_b32 s60, s2, 11"); a(f"s_add_u32 s60, s60, {QB}")
    for t in range(2): a(f"buffer_store_dwordx4 v[{44+4*t}:{47+4*t}], v62, s[{WS}:{WS+3}], s60 offen offset:{1024*t} sc1")
    a("s_waitcnt vmcnt(0)")
    atomic_inc(DBG, 0)
    a("s_branch L_WO")

    a.label("L_QF")
    lds_wait(L_SYNC, 256, 1)
    for w in range(4): a(f"ds_read_b128 v[{44+4*w}:{47+4*w}], v62 offset:{L_QP + 2048*w + 1024}")
    a("v_lshrrev_b32 v63, 1, v62")
    a("s_waitcnt lgkmcnt(0)")
    for i in range(4):
        a(f"v_add_f32 v{44+i}, v{44+i}, v{48+i}"); a(f"v_add_f32 v{52+i}, v{52+i}, v{56+i}")
    for i in range(4): a(f"v_add_f32 v{44+i}, v{44+i}, v{52+i}")
    a("v_cvt_pk_bf16_f32 v48, v44, v45"); a("v_cvt_pk_bf16_f32 v49, v46, v47")
    a(f"ds_write_b64 v63, v[48:49] offset:{L_QBF + 512}")

    lds_wait(L_TC, 16*CHK0, 8)
    gpoll(DBG, 0, 512)
    a(f"ds_add_u32 v61, v60 offset:{L_CTL}")
    stamp(4)
    a("v_lshlrev_b32 v52, 14, v2"); a("v_lshl_add_u32 v52, v1, 5, v52")
    a("s_and_b32 s60, s59, 7"); a("s_lshl_b32 s60, s60, 16"); a("s_lshr_b32 s61, s59, 3"); a("s_lshl_b32 s61, s61, 9"); a("s_add_u32 s60, s60, s61")
    a(f"s_add_u32 s60, s60, {QB}")
    for s in range(8):
        for u in range(2):
            r = 192 + 8*s + 4*u
            if not nogather: a(f"buffer_load_dwordx4 v[{r}:{r+3}], v52, s[{WS}:{WS+3}], s60 offen offset:{(s&1)*2048+16*u} sc1")
        if s & 1 and s < 7: a("s_add_u32 s60, s60, 0x1000")
    NPRE = 16*(BPOS-2)
    a("v_lshlrev_b32 v44, 14, v0"); a(f"s_add_u32 s60, s20, {(2 << PSH) + (F_VALID | 0x20)}"); a("v_add_u32 v44, s60, v44")
    a(f"s_mul_i32 s60, s4, {SB*0x4000}"); a("s_add_u32 s60, s60, s21"); a(f"s_sub_u32 s60, s60, {NPRE*0x4000}")
    a("v_lshlrev_b32 v45, 14, v0"); a("v_add_u32 v45, s60, v45"); a(f"v_or_b32 v45, {F_VALID|F_ISB}, v45")
    a(f"v_cmp_le_u32 vcc, {NPRE}, v0"); a("v_cndmask_b32 v44, v44, v45, vcc")
    for i in range(1, 4): a(f"v_add_u32 v{44+i}, {0x1000*i}, v44")
    a("s_waitcnt vmcnt(0)")
    for st in (32, 16, 8):
        for e in range(st): a(f"v_add_f32 v{192+e}, v{192+e}, v{192+st+e}")
    for e in range(4): a(f"v_cvt_pk_bf16_f32 v{48+e}, v{192+2*e}, v{193+2*e}")
    a("v_lshlrev_b32 v52, 4, v0")
    a(f"ds_write_b128 v52, v[48:51] offset:{L_QBB}")
    a(f"s_mov_b32 exec_lo, {hex((1 << (NPRE+SB)) - 1)}"); a("s_mov_b32 exec_hi, 0")
    a(f"ds_write_b128 v52, v[44:47] offset:{L_RQ + 512}")
    a("s_mov_b64 exec, -1")
    stamp(5)

    a.label("L_WO")
    stamp(2)
    a(f"s_and_b32 s60, s6, {WOM}"); a(f"s_mul_i32 s60, s60, {WOS}")
    a(f"s_mov_b32 s61, {hex(WOR[0] | WOR[1] << 8 | WOR[2] << 16 | WOR[3] << 24)}"); a(f"s_lshl_b32 s63, s{AW}, 3"); a("s_lshr_b32 s61, s61, s63"); a("s_and_b32 s61, s61, 0xff")
    a("s_lshl_b32 s61, s61, 4"); a("s_add_u32 s60, s60, s61")
    lds_wait(L_TC, "s60", 8)
    stamp(15)
    RAW, WT, ACC = 96, 64, 192
    a("v_lshlrev_b32 v52, 4, v1"); a("v_lshl_add_u32 v52, v2, 13, v52")
    a("s_lshl_b32 s60, s6, 17"); a(f"s_lshl_b32 s61, s{AW}, 8"); a("s_add_u32 s60, s60, s61")
    a("s_mov_b32 s68, 0x05040100"); a("s_mov_b32 s69, 0x07060302")
    for kb in range(4):
        for e in range(8):
            r = RAW + 32*kb + 4*e
            a(f"buffer_load_dwordx4 v[{r}:{r+3}], v52, s[{WO}:{WO+3}], s60 offen offset:{1024*(e&3)} {ntw}")
            if nowo: continue
            if e == 3: a("s_add_u32 s60, s60, 0x1000")
            if e == 7 and kb < 3: a("s_add_u32 s60, s60, 0x7000")
    for kb in range(4):
        a(f"s_waitcnt vmcnt({24 - 8*kb})")
        for blk in range(8):
            for t in range(4):
                r0 = RAW + 32*kb + 4*(2*t) + (blk >> 1); r1 = r0 + 4
                a(f"v_perm_b32 v{WT + 32*kb + 4*blk + t}, v{r1}, v{r0}, s{68 + (blk & 1)}")
    stamp(3)
    a("s_mov_b32 s62, 0")
    a(f"s_lshl_b32 s64, s{AW}, 17"); a("s_lshl_b32 s60, s7, 10"); a("s_add_u32 s64, s64, s60"); a("s_lshl_b32 s60, s6, 5"); a("s_add_u32 s64, s64, s60")
    if YA: a(f"s_add_u32 s64, s64, {YA}")
    a(f"s_mov_b32 s65, {L_REG}")
    a.label("L_PROJ")
    a("v_and_b32 v36, 7, v0"); a("v_lshlrev_b32 v36, 8, v36"); a("v_lshl_add_u32 v36, v2, 4, v36"); a("v_add_u32 v36, s65, v36")
    a("v_mov_b32 v37, s65")
    a("v_and_b32 v38, 1, v2"); a("v_lshlrev_b32 v38, 4, v38"); a("v_lshl_add_u32 v38, v1, 13, v38")
    a("s_mov_b32 s76, 0x07060501"); a("s_mov_b32 s77, 0x07060502"); a("s_mov_b32 s79, 0x07060503")
    a("s_cmp_eq_u32 s62, 3")
    a("s_cbranch_scc1 L_BAR2")
    a("s_lshl_b32 s60, s62, 2"); a(f"s_add_u32 s60, s60, {L_CTL}"); a("v_mov_b32 v39, s60")
    a("s_cmp_eq_u32 s62, 0"); a("s_cselect_b32 s60, 64, 0"); a("s_add_u32 s60, s60, 0x1000")
    lds_wait("v39", "s60", 8)
    a("s_branch L_COMB")
    a.label("L_BAR2")
    stamp(11)
    a("s_barrier")
    a.label("L_COMB")
    for kb in range(4): a(f"ds_read_b128 v[{44+4*kb}:{47+4*kb}], v36 offset:{64*kb}")
    a(f"ds_read_b128 v[32:35], v37 offset:{R_M}")
    for w in range(4): a(f"ds_read_b128 v[{224+4*w}:{227+4*w}], v37 offset:{R_L + 16*w}")
    for kb in range(4):
        a(f"s_waitcnt lgkmcnt({8 - kb})")
        for blk in range(8): mfma(ACC + 4*blk, 44 + 4*kb, WT + 32*kb + 4*blk, None if kb == 0 else ACC + 4*blk)
        if kb == 0:
            a("s_waitcnt lgkmcnt(4)")
            a("v_max3_f32 v12, v32, v33, v34"); a("v_max_f32 v12, v12, v35")
            for w in range(4): a(f"v_sub_f32 v{32+w}, v{32+w}, v12")
            for w in range(4): a(f"v_mul_f32 v{32+w}, s75, v{32+w}")
            for w in range(4): a(f"v_exp_f32 v{32+w}, v{32+w}")
        if kb == 1:
            a("s_waitcnt lgkmcnt(0)")
            for w in range(4):
                r = 224 + 4*w
                a(f"v_add_f32 v{r}, v{r}, v{r+1}"); a(f"v_add_f32 v{r+2}, v{r+2}, v{r+3}"); a(f"v_add_f32 v{r}, v{r}, v{r+2}")
            a("v_mul_f32 v13, v224, v32")
            for w in range(1, 4): a(f"v_fmac_f32 v13, v{224+4*w}, v{32+w}")
        if kb == 2:
            a("v_rcp_f32 v14, v13"); a("v_log_f32 v19, v13")
            a("v_fmac_f32 v19, s75, v12")
            for w in range(4): a(f"v_mul_f32 v{32+w}, v{32+w}, v14")
    for blk in range(8): a(f"v_mul_f32 v{20+blk}, v{ACC + 4*blk}, v32")
    for w in range(1, 4):
        for blk in range(8): a(f"v_fmac_f32 v{20+blk}, v{ACC+4*blk+w}, v{32+w}")
    for i in range(4): a(f"v_permlane16_swap_b32 v{20+i}, v{24+i}")
    for i in range(4): a(f"v_add_f32 v{20+i}, v{20+i}, v{24+i}")
    a("v_perm_b32 v16, v20, v23, s76"); a("v_perm_b32 v17, v21, v23, s77"); a("v_perm_b32 v18, v22, v23, s79")
    a("s_mov_b32 exec_hi, 0")
    if nopub: a("s_cmp_eq_u32 s62, 3"); a("s_cselect_b32 exec_lo, -1, 0")
    a(f"buffer_store_dwordx4 v[16:19], v38, s[{WS}:{WS+3}], s64 offen sc1")
    if nopub: a("s_mov_b32 exec_lo, -1")
    a("s_mov_b32 exec_hi, -1")
    a("s_cmp_eq_u32 s62, 3")
    a("s_cbranch_scc1 L_LAST")
    a("s_add_u32 s62, s62, 1"); a("s_add_u32 s64, s64, 0x80000"); a(f"s_add_u32 s65, s65, {RS}")
    a(f"s_cmp_eq_u32 s62, {BPOS-1}")
    a("s_cbranch_scc1 L_EVB")
    a(f"s_cmp_eq_u32 s62, {BPOS}")
    a("s_cbranch_scc1 L_BC")
    if BPOS == 2:
        a("s_branch L_EVA")
    else:
        a("s_branch L_PROJ")

    def dispatcher(tag):
        a("s_waitcnt vmcnt(0)")
        a(f"s_sub_u32 s49, s48, {16*LEAD}")
        a("v_lshlrev_b32 v46, 12, v0"); a("v_lshlrev_b32 v47, 2, v0")
        a("s_mov_b32 s53, 0")
        a(f"s_mov_b32 s70, {spin*16}")
        a.label(f"L_D{tag}")
        for k in range(PD):
            lw = a.newlabel("DW")
            a.label(lw)
            a(f"ds_read_b32 v44, v61 offset:{L_TC}")
            a("s_waitcnt lgkmcnt(0)")
            a("v_readfirstlane_b32 s71, v44")
            a("s_cmp_ge_u32 s71, s49")
            lg = a.newlabel("DG")
            a(f"s_cbranch_scc1 {lg}")
            a("s_sleep 2")
            a("s_sub_u32 s70, s70, 1")
            a(f"s_cbranch_scc0 {lw}")
            a(f"s_branch L_DX{tag}")
            a.label(lg)
            a("s_mov_b64 exec, 1")
            a(f"v_mov_b32 v{48+k}, 1")
            a(f"buffer_atomic_add v{48+k}, off, s[{WS}:{WS+3}], s50 sc0 sc1")
            a("s_mov_b64 exec, -1")
            a("s_add_u32 s49, s49, 16")
            a("s_add_u32 s53, s53, 1")
            ln = a.newlabel("DN")
            a(f"s_cmp_lt_u32 s53, {PD}")
            a(f"s_cbranch_scc1 {ln}")
            a(f"s_waitcnt vmcnt({PD-1})")
            a(f"v_readfirstlane_b32 s71, v{48 + (k+1) % PD}")
            a("s_cmp_ge_u32 s71, s51")
            a(f"s_cbranch_scc1 L_DX{tag}")
            a("s_lshl_b32 s71, s71, 14"); a("s_add_u32 s71, s71, s52")
            a("v_add_u32 v44, s71, v46"); a("v_add_u32 v45, s48, v47")
            a("s_mov_b64 exec, 15")
            a("ds_write_b32 v45, v44")
            a("s_mov_b64 exec, -1")
            a("s_add_u32 s48, s48, 16")
            a.label(ln)
        a(f"s_branch L_D{tag}")
        a.label(f"L_DX{tag}")

    a.label("L_EVB")
    a(f"s_cmp_lg_u32 s{AW}, 3")
    a("s_cbranch_scc1 L_PROJ")
    NP2 = 16*(3-BPOS)
    a("v_lshlrev_b32 v52, 14, v0"); a(f"s_add_u32 s60, s20, {(2 << PSH) + (F_VALID | 0x20)}"); a("v_add_u32 v52, s60, v52")
    a(f"s_lshl_b32 s60, s6, {HS}"); a(f"s_mul_i32 s61, s7, {SA*0x4000 if pat == 0 else 1 << JS}"); a("s_add_u32 s60, s60, s61"); a(f"s_add_u32 s60, s60, {(3 << PSH) - NP2*0x4000 + (F_VALID | 0x30)}")
    a("v_lshlrev_b32 v53, 14, v0"); a("v_add_u32 v53, s60, v53")
    a(f"v_cmp_le_u32 vcc, {NP2}, v0"); a("v_cndmask_b32 v52, v52, v53, vcc")
    for i in range(1, 4): a(f"v_add_u32 v{52+i}, {0x1000*i}, v52")
    a("v_lshlrev_b32 v56, 4, v0")
    a(f"s_mov_b32 s48, {L_RQ + 16*(16*BPOS + SB)}")
    if PB_N > 0:
        a("s_lshl_b32 s50, s59, 8"); a(f"s_add_u32 s50, s50, {CTR + 32*256}")
        a(f"s_mov_b32 s51, {PB_N}")
        a(f"s_add_u32 s52, s21, {8*SB*0x4000 + (F_VALID|F_ISB)}")
        stamp(6)
        dispatcher("B")
    a("v_add_u32 v56, s48, v56")
    a(f"s_mov_b32 exec_lo, {hex((1 << (NP2+SA)) - 1)}"); a("s_mov_b32 exec_hi, 0")
    a("ds_write_b128 v56, v[52:55]")
    a("s_mov_b64 exec, -1")
    a("s_lshr_b32 s60, s48, 2"); a(f"s_sub_u32 s60, {256 + (L_RQ + 256*BPOS)//4}, s60"); a("v_mov_b32 v56, s60")
    a(f"ds_add_u32 v61, v56 offset:{L_CTL + 16}")
    a(f"s_add_u32 s48, s48, {16*(NP2+SA)}")
    stamp(7)
    a("s_branch L_PROJ")

    a.label("L_BC")
    a("v_lshlrev_b32 v36, 3, v0"); a(f"s_lshl_b32 s60, s{AW}, 9"); a("v_add_u32 v37, s60, v36")
    a(f"s_lshl_b32 s60, s{AW}, 4"); a("v_mov_b32 v38, s60"); a(f"s_lshl_b32 s60, s{AW}, 6"); a("v_mov_b32 v39, s60")
    a("s_lshl_b32 s60, s59, 2"); a(f"s_add_u32 s60, s60, s{AW}")
    a("s_and_b32 s63, s60, 31"); a("s_lshl_b32 s63, s63, 8"); a(f"s_add_u32 s63, s63, {CTR + 64*256}")
    a("s_lshl_b32 s60, s60, 3"); a("s_add_u32 s60, s60, s4")
    a("s_lshl_b32 s61, s60, 2"); a(f"s_add_u32 s61, s61, {PBL}")
    a("s_lshl_b32 s60, s60, 9"); a(f"s_add_u32 s60, s60, {PB}")
    lds_wait(L_CTL + 16, 16384, 4)
    a(f"ds_read_b128 v[32:35], v38 offset:{L_BM}")
    for w in range(4): a(f"ds_read_b128 v[{224+4*w}:{227+4*w}], v39 offset:{L_BL + 16*w}")
    for w in range(4): a(f"ds_read_b64 v[{44+2*w}:{45+2*w}], v37 offset:{L_BO + 2048*w}")
    a("s_waitcnt lgkmcnt(0)")
    a("v_max3_f32 v12, v32, v33, v34"); a("v_max_f32 v12, v12, v35")
    for w in range(4): a(f"v_sub_f32 v{32+w}, v{32+w}, v12")
    for w in range(4): a(f"v_mul_f32 v{32+w}, s75, v{32+w}")
    for w in range(4): a(f"v_exp_f32 v{32+w}, v{32+w}")
    for w in range(4):
        r = 224 + 4*w
        a(f"v_add_f32 v{r}, v{r}, v{r+1}"); a(f"v_add_f32 v{r+2}, v{r+2}, v{r+3}"); a(f"v_add_f32 v{r}, v{r}, v{r+2}")
    a("v_mul_f32 v13, v224, v32")
    for w in range(1, 4): a(f"v_fmac_f32 v13, v{224+4*w}, v{32+w}")
    a("v_rcp_f32 v14, v13"); a("v_log_f32 v19, v13")
    a("v_fmac_f32 v19, s75, v12")
    for e in range(2):
        a(f"v_mul_f32 v{16+e}, v{44+e}, v32")
        for w in range(1, 4): a(f"v_fmac_f32 v{16+e}, v{44+2*w+e}, v{32+w}")
        a(f"v_mul_f32 v{16+e}, v{16+e}, v14")
    a(f"buffer_store_dwordx2 v[16:17], v36, s[{WS}:{WS+3}], s60 offen sc1")
    a("s_mov_b64 exec, 1")
    a(f"buffer_store_dword v19, off, s[{WS}:{WS+3}], s61 sc1")
    a("s_mov_b64 exec, -1")
    a("s_waitcnt vmcnt(0)")
    atomic_inc(WS, "s63")
    stamp(8)
    a(f"s_cmp_eq_u32 s{AW}, 1"); a("s_cbranch_scc1 L_S3")
    if BPOS == 2: a("s_branch L_PROJ")
    a.label("L_EVA")
    a(f"s_cmp_eq_u32 s{AW}, 0"); a("s_cbranch_scc1 L_YB")
    a(f"s_cmp_lg_u32 s{AW}, 3")
    a("s_cbranch_scc1 L_PROJ")
    if PA_N > 0:
        a("s_lshl_b32 s50, s6, 8"); a(f"s_add_u32 s50, s50, {CTR}")
        a(f"s_mov_b32 s51, {PA_N}")
        a("s_lshl_b32 s52, s6, 21"); a(f"s_add_u32 s52, s52, {0xc000000 + 8*SA*0x4000 + (F_VALID | 0x30)}")
        stamp(9)
        dispatcher("A")
    a("v_lshlrev_b32 v53, 2, v0"); a("v_add_u32 v53, s48, v53"); a(f"v_mov_b32 v52, {hex(ENDDESC)}")
    a("s_mov_b32 exec_hi, 0")
    a("ds_write_b32 v53, v52")
    a("s_mov_b32 exec_hi, -1")
    stamp(10)
    a("s_branch L_PROJ")

    a.label("L_S3")
    a("v_lshlrev_b32 v52, 4, v1"); a("v_lshl_add_u32 v52, v2, 14, v52")
    a("s_lshl_b32 s60, s5, 17"); a("s_lshr_b32 s61, s4, 2"); a("s_lshl_b32 s61, s61, 16"); a("s_add_u32 s60, s60, s61")
    a("s_and_b32 s61, s4, 3"); a("s_lshl_b32 s61, s61, 8"); a("s_add_u32 s60, s60, s61")
    for j in range(16):
        a(f"buffer_load_dwordx4 v[{RW+4*j}:{RW+4*j+3}], v52, s[{WOB}:{WOB+3}], s60 offen offset:{1024*(j&3)} nt")
        if j & 3 == 3 and j < 15: a("s_add_u32 s60, s60, 0x1000")
    a("s_lshl_b32 s60, s5, 8"); a(f"s_add_u32 s60, s60, {CTR + 64*256}")
    lds_wait(L_TC, 16*(16*BPOS + 4 + S3D), 8)
    gpoll(WS, "s60", 32)
    stamp(9)
    a("v_lshrrev_b32 v52, 3, v1"); a("v_lshlrev_b32 v52, 8, v52"); a("v_and_b32 v53, 7, v1"); a("v_add_u32 v52, v52, v53")
    a("v_lshlrev_b32 v53, 2, v52")
    a("v_lshlrev_b32 v52, 9, v52"); a("v_lshl_add_u32 v52, v2, 6, v52")
    a("s_lshl_b32 s60, s5, 12"); a("s_lshr_b32 s61, s4, 2"); a("s_lshl_b32 s61, s61, 8"); a("s_add_u32 s60, s60, s61"); a(f"s_add_u32 s60, s60, {PB}")
    a("s_add_u32 s61, s60, 0x40000")
    a("s_lshl_b32 s63, s5, 5"); a(f"s_add_u32 s63, s63, {PBL}")
    for t in range(2):
        for u in range(4): a(f"buffer_load_dwordx4 v[{12+16*t+4*u}:{15+16*t+4*u}], v52, s[{WS}:{WS+3}], s{60+t} offen offset:{16*u} sc1")
        a(f"buffer_load_dword v{54+t}, v53, s[{WS}:{WS+3}], s63 offen offset:{2048*t} sc1")
    a("s_waitcnt vmcnt(0)")
    DP8 = ("quad_perm:[1,0,3,2]", "quad_perm:[2,3,0,1]", "row_half_mirror")
    for t in range(2):
        O = 12 + 16*t
        a(f"v_mov_b32 v56, v{54+t}")
        for dp in DP8: a(f"v_max_f32_dpp v56, v56, v56 {dp} {DP}")
        a(f"v_sub_f32 v56, v{54+t}, v56"); a("v_exp_f32 v56, v56")
        a("v_mov_b32 v57, v56")
        for dp in DP8: a(f"v_add_f32_dpp v57, v57, v57 {dp} {DP}")
        a("v_rcp_f32 v57, v57"); a("v_mul_f32 v56, v56, v57")
        for i in range(16): a(f"v_mul_f32 v{O+i}, v{O+i}, v56")
        for dp in DP8:
            for i in range(16): a(f"v_add_f32_dpp v{O+i}, v{O+i}, v{O+i} {dp} {DP}")
        for i in range(8): a(f"v_cvt_pk_bf16_f32 v{O+i}, v{O+2*i}, v{O+2*i+1}")
    for j in range(16):
        for t in range(2): diag(44 + 8*(j & 1) + 4*t, 12 + 16*t + (j >> 1), j & 1)
        for t in range(2): mfma(20 + 4*t, 44 + 8*(j & 1) + 4*t, RW + 4*j, None if j == 0 else 20 + 4*t)
    a("v_lshrrev_b32 v52, 5, v0"); a("v_lshlrev_b32 v52, 17, v52"); a("v_lshl_add_u32 v52, v1, 11, v52")
    a("v_and_b32 v53, 1, v2"); a("v_lshl_add_u32 v52, v53, 4, v52")
    a("s_and_b32 s60, s4, 3"); a("s_lshl_b32 s63, s60, 8"); a(f"s_add_u32 s63, s63, {CTR + 96*256}")
    a("s_lshl_b32 s60, s60, 15"); a("s_lshr_b32 s61, s4, 2"); a("s_lshl_b32 s61, s61, 10"); a("s_add_u32 s60, s60, s61")
    a("s_lshl_b32 s61, s5, 5"); a("s_add_u32 s60, s60, s61"); a(f"s_add_u32 s60, s60, {YB}")
    a("s_add_u32 s61, s60, 0x40000")
    for t in range(2): a(f"buffer_store_dwordx4 v[{20+4*t}:{23+4*t}], v52, s[{WS}:{WS+3}], s{60+t} offen sc1")
    a("s_waitcnt vmcnt(0)")
    atomic_inc(WS, "s63")
    stamp(10)
    a("s_branch L_PROJ")

    def reduce4(r, dst):
        a(f"v_permlane32_swap_b32 v{r}, v{r+1}"); a(f"v_permlane32_swap_b32 v{r+2}, v{r+3}")
        a(f"v_add_f32 v{r}, v{r}, v{r+1}"); a(f"v_add_f32 v{r+2}, v{r+2}, v{r+3}")
        a(f"v_permlane16_swap_b32 v{r}, v{r+2}"); a(f"v_add_f32 v{r}, v{r}, v{r+2}")
        a(f"v_add_f32_dpp v{r}, v{r}, v{r} row_ror:2 {DP}")
        a(f"v_add_f32_dpp v{r}, v{r}, v{r} row_ror:4 {DP}")
        a(f"v_add_f32_dpp v{dst}, v{r}, v{r} row_ror:8 {DP}")
    a.label("L_YB")
    a("s_bfe_u32 s60, s2, 0x20004"); a("s_lshl_b32 s60, s60, 8"); a(f"s_add_u32 s60, s60, {CTR + 96*256}")
    lds_wait(L_TC, 16*YBR, 8)
    gpoll(WS, "s60", 64)
    stamp(9)
    a("v_lshlrev_b32 v40, 4, v0")
    a("s_lshl_b32 s60, s2, 11"); a(f"s_add_u32 s60, s60, {YB}")
    a(f"buffer_load_dwordx4 v[12:15], v40, s[{WS}:{WS+3}], s60 offen sc1")
    a(f"buffer_load_dwordx4 v[16:19], v40, s[{WS}:{WS+3}], s60 offen offset:1024 sc1")
    a("s_lshl_b32 s66, s2, 13")
    if YA: a(f"s_add_u32 s66, s66, {YA}")
    a("s_add_u32 s67, s66, 0x1000")
    a("s_lshl_b32 s63, s2, 4")
    a("v_and_b32 v41, 1, v0"); a("v_lshlrev_b32 v41, 2, v41"); a("v_and_b32 v42, 1, v2"); a("v_lshl_add_u32 v41, v42, 1, v41"); a("v_lshrrev_b32 v42, 5, v0"); a("v_add_u32 v41, v41, v42")
    a("v_lshlrev_b32 v41, 1, v41")
    a("s_waitcnt vmcnt(0)")
    for e in range(4): a(f"v_add_f32 v{12+e}, v{12+e}, v{16+e}")
    reduce4(12, 16)
    a("v_cvt_pk_bf16_f32 v16, v16, v16"); a("v_and_b32 v16, 0xffff0000, v16")
    a("v_mul_f32 v16, v16, v63"); a("v_cvt_pk_bf16_f32 v16, v16, v16"); a("v_and_b32 v63, 0xffff0000, v16")
    stamp(10)
    a("s_branch L_PROJ")

    a.label("L_LAST")
    stamp(12)
    a(f"s_cmp_eq_u32 s{AW}, 0")
    a("s_cbranch_scc1 L_SWEEP")
    stamp_flush(44)
    a("s_endpgm")
    a.label("L_SWEEP")
    a(f"s_mov_b32 s70, {spin}")
    a("s_mov_b32 s76, 0x0c04000c"); a("s_mov_b32 s77, 0x0402010c")
    a.label("L_YPOLL")
    for i in range(8): a(f"buffer_load_dwordx4 v[{192+4*i}:{195+4*i}], v40, s[{WS}:{WS+3}], s{66 + (i>>2)} offen offset:{1024*(i&3)} sc1")
    for i in range(8):
        a(f"s_waitcnt vmcnt({7-i})")
        r = 192 + 4*i
        if i == 0: a(f"v_max3_u32 v12, v{r}, v{r+1}, v{r+2}"); a(f"v_max_u32 v12, v12, v{r+3}")
        else: a(f"v_max3_u32 v12, v12, v{r}, v{r+1}"); a(f"v_max3_u32 v12, v12, v{r+2}, v{r+3}")
    a("v_cmp_eq_u32 vcc, -1, v12")
    if nopub: a("s_branch L_YDONE")
    a("s_cbranch_vccz L_YDONE")
    a("s_mov_b64 exec, vcc")
    a("s_sub_u32 s70, s70, 1"); a("s_cmp_lg_u32 s70, 0")
    a("s_cbranch_scc1 L_YPOLL")
    a.label("L_YDONE")
    a("s_mov_b64 exec, -1")
    stamp(13)
    a("v_max3_f32 v12, v195, v199, v203"); a("v_max3_f32 v13, v207, v211, v215"); a("v_max3_f32 v12, v12, v219, v223"); a("v_max_f32 v12, v12, v13")
    for i in range(8): a(f"v_sub_f32 v{20+i}, v{195+4*i}, v12")
    for i in range(8): a(f"v_exp_f32 v{20+i}, v{20+i}")
    for i in range(8): a(f"v_perm_b32 v{195+4*i}, v{193+4*i}, v{192+4*i}, s76")
    a("v_add_f32 v12, v20, v21"); a("v_add_f32 v13, v22, v23"); a("v_add_f32 v14, v24, v25"); a("v_add_f32 v15, v26, v27")
    a("v_add_f32 v12, v12, v13"); a("v_add_f32 v14, v14, v15"); a("v_add_f32 v12, v12, v14"); a("v_rcp_f32 v12, v12")
    for i in range(8): a(f"v_perm_b32 v{195+4*i}, v{194+4*i}, v{195+4*i}, s77")
    for e in range(4): a(f"v_mul_f32 v{16+e}, v{192+e}, v20")
    for i in range(1, 8):
        for e in range(4): a(f"v_fmac_f32 v{16+e}, v{192+4*i+e}, v{20+i}")
    for e in range(4): a(f"v_mul_f32 v{16+e}, v{16+e}, v12")
    reduce4(16, 12)
    a("v_cvt_pk_bf16_f32 v12, v12, v12"); a("v_and_b32 v12, 0xffff0000, v12")
    a("v_mul_f32 v12, v12, v62"); a("v_cvt_pk_bf16_f32 v12, v12, v12"); a("v_and_b32 v12, 0xffff0000, v12")
    a("v_add_f32 v12, v12, v63"); a("v_cvt_pk_bf16_f32 v12, v12, v12")
    a("s_mov_b32 exec_lo, 0x00030003"); a("s_mov_b32 exec_hi, 0x00030003")
    a(f"buffer_store_short v12, v41, s[{OUT}:{OUT+3}], s63 offen")
    stamp(14)
    stamp_flush(44)
    a.label("L_END")
    a("s_endpgm")

    a.raw('.section .rodata,"a"')
    a.raw(".p2align 6")
    a.raw(f".amdhsa_kernel {KN}_kernel")
    a.raw("  .amdhsa_next_free_vgpr 256")
    a.raw("  .amdhsa_next_free_sgpr 102")
    a.raw("  .amdhsa_accum_offset 256")
    a.raw("  .amdhsa_group_segment_fixed_size 0")
    a.raw("  .amdhsa_kernarg_size 112")
    a.raw("  .amdhsa_user_sgpr_count 2")
    a.raw("  .amdhsa_user_sgpr_kernarg_segment_ptr 1")
    a.raw("  .amdhsa_system_sgpr_workgroup_id_x 1")
    a.raw(".end_amdhsa_kernel")
    assert a.maxv <= 256 and a.maxs <= 102, (a.maxv, a.maxs)
    return a.text()

if __name__ == "__main__":
    import argparse
    ap = argparse.ArgumentParser()
    ap.add_argument("out")
    ap.add_argument("opts", nargs="*")
    args = ap.parse_args()
    kw = {}
    for o in args.opts:
        k, v = o.split("=")
        try: v = eval(v)
        except Exception: pass
        kw[k] = v
    open(args.out, "w").write(gen(**kw))
```

```python
import struct, sys
from asmlib import Asm
KN = "gated_mix__mha_block_cached__sliding_block_cached__decode"

def f32(x): return "0x%08x" % struct.unpack("<I", struct.pack("<f", x))[0]
LOG2E = 1.4426950408889634
SCALE = 128 ** -0.5

REC, YY, QB, CTR, STAMP, STAMP2 = 0x000000, 0x200000, 0x280000, 0x390000, 0x1000000, 0x1100000
L_RQ, L_CTL, L_QP, L_QBF, L_QBB, L_REG, RS = 0, 4096, 5120, 13312, 14336, 15360, 2176
L_TC, L_SYNC, L_FIN = L_CTL + 32, L_CTL + 48, L_CTL + 20
R_M, R_L = 2048, 2064
L_REGB = L_REG + 4*RS
LDS_BYTES = 32768
F_VALID, F_ISB, F_END = 1, 0x40, 0x80
ENDDESC = 0xF0000000 | F_VALID | F_END
DP = "row_mask:0xf bank_mask:0xf"

HEADER = open("cdna_kernels/" + KN + ".s.ref").read().split("; Override launch")[0]

def kd(a, name, vg):
    a.raw('.section .rodata,"a"')
    a.raw(".p2align 6")
    a.raw(f".amdhsa_kernel {name}")
    a.raw(f"  .amdhsa_next_free_vgpr {vg}")
    a.raw("  .amdhsa_next_free_sgpr 102")
    a.raw(f"  .amdhsa_accum_offset {vg}")
    a.raw("  .amdhsa_group_segment_fixed_size 0")
    a.raw("  .amdhsa_kernarg_size 112")
    a.raw("  .amdhsa_user_sgpr_count 2")
    a.raw("  .amdhsa_user_sgpr_kernarg_segment_ptr 1")
    a.raw("  .amdhsa_system_sgpr_workgroup_id_x 1")
    a.raw(".end_amdhsa_kernel")

def gen(D=4, mimic=True, stamps=False, spin=100000, lds=LDS_BYTES, ntkv="nt", ntw="", prio=3, psleep=64,
        SA=12, PD=3, LEAD=4, CHK0=16, s1nt='nt', recf='sc1', recf3='sc1', clrf='sc1', hmap=0, wqfirst=0, k2=True, wont='nt', fsl=1, dbgq=0):
    a = Asm()
    CS = LOG2E if mimic else LOG2E * SCALE
    PA_N = 128 - 8*SA
    assert 1 <= SA <= 16 and LEAD >= PD
    a.raw(HEADER.rstrip("\n"))
    a.raw(f"; @launch kernel={KN}_kernel grid=(256,1,1) block=(512,1,1) lds={lds}")
    if k2: a.raw(f"; @launch kernel=gm_fin_kernel grid=(256,1,1) block=(256,1,1) lds=8192")
    a.raw('.amdgcn_target "amdgcn-amd-amdhsa--gfx950"')
    a.raw(".text")
    a.raw(f".globl {KN}_kernel")
    a.raw(".p2align 8")
    a.raw(f".type {KN}_kernel,@function")
    a.raw(f"{KN}_kernel:")
    WS = 24
    VST = 3

    def stamp(idx):
        if not stamps: return
        a("s_memrealtime s[96:97]")
        a("s_waitcnt lgkmcnt(0)")
        a(f"v_writelane_b32 v{VST}, s96, {idx}")
    def stamp_init():
        if stamps: a(f"v_mov_b32 v{VST}, 0")
    def stamp_flush(vt2, base=STAMP):
        if not stamps: return
        a("s_mov_b64 exec, -1")
        a(f"v_lshlrev_b32 v{vt2}, 2, v0")
        a("s_lshl_b32 s96, s2, 3"); a("s_add_u32 s96, s96, s3"); a("s_lshl_b32 s96, s96, 6"); a(f"s_add_u32 s96, s96, {base}")
        a("s_mov_b64 exec, 0xffff")
        a(f"buffer_store_dword v{VST}, v{vt2}, s[{WS}:{WS+3}], s96 offen")

    def selectors(tmp):
        a(f"v_and_b32 v{tmp}, 1, v0")
        a(f"v_cmp_eq_u32 vcc, 1, v{tmp}")
        a(f"v_mov_b32 v{tmp+1}, 0x0c0c0100"); a(f"v_mov_b32 v{tmp+2}, 0x01000c0c")
        a(f"v_cndmask_b32 v{tmp+1}, v{tmp+1}, v{tmp+2}, vcc")
        a(f"v_mov_b32 v{tmp+2}, 0x0c0c0302"); a(f"v_mov_b32 v{tmp+3}, 0x03020c0c")
        a(f"v_cndmask_b32 v{tmp+2}, v{tmp+2}, v{tmp+3}, vcc")
        a(f"v_bfe_u32 v{tmp}, v0, 1, 2")
        a(f"v_mov_b32 v{tmp+3}, 0x0c0c0c0c")
        for r in range(4):
            a(f"v_cmp_eq_u32 vcc, {r}, v{tmp}")
            a(f"v_cndmask_b32 v{4+r}, v{tmp+3}, v{tmp+1}, vcc")
            a(f"v_cndmask_b32 v{8+r}, v{tmp+3}, v{tmp+2}, vcc")

    def diag(dst, src, half):
        for r in range(4):
            a(f"v_perm_b32 v{dst+r}, v{src}, v{src}, v{(8 if half else 4)+r}")

    def mfma(d, A, B, c):
        cs = "0" if c is None else f"v[{c}:{c+3}]"
        a(f"v_mfma_f32_16x16x32_bf16 v[{d}:{d+3}], v[{A}:{A+3}], v[{B}:{B+3}], {cs}")

    R = dict(Q=[12, 192], S=[28, 32], PK=[36, 208], T=[38, 210], M=[39, 211], NM=[40, 212], L=[41, 213], O=[60, 216], AOP=44, U=42)
    vRQ, vPO, vPM, vPL, vQ, vT, vD, vBO, vBM, vBL, vFOUR, vCNT, vQB, vZ = 43, 220, 221, 222, 224, 225, 226, 227, 228, 229, 230, 231, 232, 233
    SL = 64
    def sK(d): return SL + 32*d
    def sV(d): return SL + 32*d + 16
    def iK(d):
        for i in range(4): a(f"buffer_load_dwordx4 v[{sK(d)+4*i}:{sK(d)+4*i+3}], v1, s[12:15], s20 offen offset:{64*i} {ntkv}")
    def iV(d):
        for j in range(4): a(f"buffer_load_dwordx4 v[{sV(d)+4*j}:{sV(d)+4*j+3}], v2, s[16:19], s20 offen offset:{256*j} {ntkv}")

    slow_paths, spin_paths = [], []
    def tile(ns, d):
        K, V = sK(d), sV(d)
        wait = (2*D-1)*4
        ty = "AB"[ns-1]
        a.label(f"L_{ty}{d}")
        a(f"s_xor_b32 s22, s{40+d}, s45"); a("s_and_b32 s22, s22, 0xf0")
        a(f"s_cbranch_scc1 L_PHS{d}")
        a.label(f"L_{ty}{d}G")
        a("s_mov_b64 exec, 1")
        a(f"ds_read_b32 v{vD}, v{vRQ}")
        a(f"ds_add_rtn_u32 v{vT}, v{vZ}, v{vFOUR} offset:{L_TC}")
        a("s_mov_b64 exec, -1")
        a("s_add_u32 s47, s47, 1")
        a(f"s_waitcnt vmcnt({wait})")
        for i in range(4):
            for s in range(ns):
                mfma(R["S"][s], K + 4*i, R["Q"][s] + 4*i, None if i == 0 else R["S"][s])
        a("s_waitcnt lgkmcnt(0)")
        a.label(f"L_{ty}{d}C")
        a(f"v_readfirstlane_b32 s{40+d}, v{vD}")
        a(f"s_bitcmp1_b32 s{40+d}, 0")
        a(f"s_cbranch_scc0 L_SP{ty}{d}")
        spin_paths.append((ty, d))
        a(f"s_and_b32 s20, s{40+d}, 0xfffff000")
        a(f"s_bitcmp1_b32 s{40+d}, 6")
        a("s_cselect_b64 s[12:13], s[32:33], s[28:29]")
        a("s_cselect_b64 s[16:17], s[34:35], s[30:31]")
        a("s_cselect_b32 s14, s37, s36")
        a("s_cselect_b32 s18, s37, s36")
        a(f"v_mov_b32 v{vRQ}, v{vT}")
        iK(d)
        if mimic:
            for s in range(ns):
                S, PK = R["S"][s], R["PK"][s]
                a(f"v_cvt_pk_bf16_f32 v{PK}, v{S}, v{S+1}"); a(f"v_cvt_pk_bf16_f32 v{PK+1}, v{S+2}, v{S+3}")
                a(f"v_lshlrev_b32 v{S}, 16, v{PK}"); a(f"v_and_b32 v{S+1}, 0xffff0000, v{PK}")
                a(f"v_lshlrev_b32 v{S+2}, 16, v{PK+1}"); a(f"v_and_b32 v{S+3}, 0xffff0000, v{PK+1}")
                for i in range(4): a(f"v_mul_f32 v{S+i}, {f32(SCALE)}, v{S+i}")
                a(f"v_cvt_pk_bf16_f32 v{PK}, v{S}, v{S+1}"); a(f"v_cvt_pk_bf16_f32 v{PK+1}, v{S+2}, v{S+3}")
                a(f"v_lshlrev_b32 v{S}, 16, v{PK}"); a(f"v_and_b32 v{S+1}, 0xffff0000, v{PK}")
                a(f"v_lshlrev_b32 v{S+2}, 16, v{PK+1}"); a(f"v_and_b32 v{S+3}, 0xffff0000, v{PK+1}")
        for s in range(ns):
            S, T = R["S"][s], R["T"][s]
            a(f"v_max3_f32 v{T}, v{S}, v{S+1}, v{S+2}")
            a(f"v_max_f32 v{T}, v{T}, v{S+3}")
        a(f"v_cmp_gt_f32 vcc, v{R['T'][0]}, v{R['M'][0]}")
        if ns == 2:
            a(f"v_cmp_gt_f32 s[76:77], v{R['T'][1]}, v{R['M'][1]}")
            a("s_or_b64 vcc, vcc, s[76:77]")
        ls, lb = a.newlabel("SLOW"), a.newlabel("BACK")
        a(f"s_cbranch_vccnz {ls}")
        a.label(lb)
        slow_paths.append((ls, lb, ns))
        for s in range(ns):
            S = R["S"][s]
            for i in range(4): a(f"v_fma_f32 v{S+i}, v{S+i}, s75, v{R['NM'][s]}")
            for i in range(4): a(f"v_exp_f32 v{S+i}, v{S+i}")
        for s in range(ns):
            S, PK, L, T = R["S"][s], R["PK"][s], R["L"][s], R["T"][s]
            a(f"v_cvt_pk_bf16_f32 v{PK}, v{S}, v{S+1}"); a(f"v_cvt_pk_bf16_f32 v{PK+1}, v{S+2}, v{S+3}")
            a(f"v_add_f32 v{T}, v{S}, v{S+1}"); a(f"v_add_f32 v{S+2}, v{S+2}, v{S+3}")
            a(f"v_add_f32 v{T}, v{T}, v{S+2}"); a(f"v_add_f32 v{L}, v{L}, v{T}")
        first = True
        for s in range(ns):
            for j in range(4): diag(R["AOP"] + 4*j, R["PK"][s] + (j >> 1), j & 1)
            if first: a(f"s_waitcnt vmcnt({wait})"); first = False
            for j in range(4): mfma(R["O"][s], R["AOP"] + 4*j, V + 4*j, R["O"][s])
        iV(d)

    def emit_slow():
        for ls, lb, ns in slow_paths:
            a.label(ls)
            a.nop(8)
            U = R["U"]
            for s in range(ns):
                T, M, NM, L, O = R["T"][s], R["M"][s], R["NM"][s], R["L"][s], R["O"][s]
                a(f"v_mov_b32 v{U}, v{T}"); a(f"v_permlane16_swap_b32 v{T}, v{U}"); a(f"v_max_f32 v{T}, v{T}, v{U}")
                a(f"v_mov_b32 v{U}, v{T}"); a(f"v_permlane32_swap_b32 v{T}, v{U}"); a(f"v_max3_f32 v{T}, v{T}, v{U}, v{M}")
                a(f"v_sub_f32 v{U}, v{M}, v{T}"); a(f"v_mul_f32 v{U}, s75, v{U}"); a(f"v_exp_f32 v{U}, v{U}")
                a(f"v_mov_b32 v{M}, v{T}")
                a(f"v_mul_f32 v{NM}, s74, v{T}")
                a(f"v_mul_f32 v{L}, v{L}, v{U}")
                if ns == 2:
                    a(f"v_readlane_b32 s76, v{U}, 0"); a(f"v_readlane_b32 s77, v{U}, 8")
                    a(f"v_mov_b32 v{U}, s76"); a(f"v_mov_b32 v{T}, s77")
                    a(f"v_cndmask_b32 v{U}, v{U}, v{T}, s[72:73]")
                for i in range(4): a(f"v_mul_f32 v{O+i}, v{O+i}, v{U}")
            a.settle()
            a(f"s_branch {lb}")
        slow_paths.clear()
        for ty, d in spin_paths:
            a.label(f"L_SP{ty}{d}")
            a("s_sleep 1")
            a("s_mov_b64 exec, 1")
            a(f"ds_read_b32 v{vD}, v{vRQ}")
            a("s_mov_b64 exec, -1")
            a("s_sub_u32 s70, s70, 1")
            a("s_waitcnt lgkmcnt(0)")
            a(f"s_cbranch_scc0 L_{ty}{d}C")
            a(f"v_mov_b32 v{vD}, {hex(ENDDESC)}")
            a("s_mov_b32 s70, 0")
            a.nop(2)
            a(f"s_branch L_{ty}{d}C")
        spin_paths.clear()

    def attn_init(ns):
        for s in range(ns):
            a(f"v_mov_b32 v{R['M'][s]}, {f32(-3.0e38)}"); a(f"v_mov_b32 v{R['NM'][s]}, {f32(3.0e38*CS if 3.0e38*CS < 3.4e38 else 3.0e38)}"); a(f"v_mov_b32 v{R['L'][s]}, 0")
            for i in range(4): a(f"v_mov_b32 v{R['O'][s]+i}, 0")

    a("s_cmp_ge_u32 s2, 256")
    a("s_cbranch_scc1 L_END")
    a("s_load_dwordx4 s[28:31], s[0:1], 8")
    a("v_lshrrev_b32 v1, 6, v0")
    a("v_and_b32 v0, 63, v0")
    a("s_and_b32 s4, s2, 7")
    a("v_readfirstlane_b32 s3, v1")
    a("s_lshr_b32 s5, s2, 3")
    if hmap == 0:
        a("s_lshr_b32 s7, s4, 1"); a("s_xor_b32 s6, s4, s7"); a("s_and_b32 s6, s6, 1"); a("s_lshl_b32 s6, s6, 4")
        a("s_lshr_b32 s8, s5, 1"); a("s_add_u32 s6, s6, s8")
        a("s_lshl_b32 s7, s7, 1"); a("s_and_b32 s8, s5, 1"); a("s_add_u32 s7, s7, s8")
    elif hmap == 1:
        a("s_lshr_b32 s6, s4, 1"); a("s_lshl_b32 s6, s6, 3"); a("s_lshr_b32 s7, s5, 2"); a("s_add_u32 s6, s6, s7")
        a("s_and_b32 s7, s4, 1"); a("s_lshl_b32 s7, s7, 2"); a("s_and_b32 s8, s5, 3"); a("s_add_u32 s7, s7, s8")
    elif hmap == 2:
        a("s_lshl_b32 s6, s4, 2"); a("s_lshr_b32 s7, s5, 3"); a("s_add_u32 s6, s6, s7"); a("s_and_b32 s7, s5, 7")
    elif hmap == 3:
        a("s_mov_b32 s6, s5"); a("s_mov_b32 s7, s4")
    a(f"s_lshl_b32 s20, s6, 21"); a(f"s_lshl_b32 s8, s7, 18"); a("s_add_u32 s20, s20, s8")
    a("s_cmp_ge_u32 s3, 4")
    a("s_cbranch_scc1 L_AUX")

    a("s_load_dwordx4 s[32:35], s[0:1], 48")
    a("v_and_b32 v3, 15, v0"); a("v_lshrrev_b32 v43, 4, v0")
    a("s_lshl_b32 s21, s3, 12")
    a("s_add_u32 s20, s20, s21")
    a("v_lshlrev_b32 v1, 8, v3"); a("v_lshl_add_u32 v1, v43, 4, v1")
    a("v_lshlrev_b32 v2, 4, v3"); a("v_lshl_add_u32 v2, v43, 10, v2")
    a("s_mov_b32 s36, 0x10000000"); a("s_mov_b32 s37, 0x4000000")
    a("s_mov_b32 s14, s36"); a("s_mov_b32 s18, s36")
    a("s_mov_b32 s15, 0x20000"); a("s_mov_b32 s19, 0x20000")
    a("s_waitcnt lgkmcnt(0)")
    a("s_mov_b64 s[12:13], s[28:29]"); a("s_mov_b64 s[16:17], s[30:31]")
    stamp_init(); stamp(0)
    for d in range(D):
        if wqfirst == d + 1: a("s_barrier")
        iK(d); iV(d)
        a("s_add_u32 s20, s20, 0x4000")
        a(f"s_mov_b32 s{40+d}, {F_VALID}")
    if stamps:
        a(f"s_load_dwordx2 s[{WS}:{WS+1}], s[0:1], 104"); a(f"s_mov_b32 s{WS+2}, 0x40000000"); a(f"s_mov_b32 s{WS+3}, 0x20000")
        a("s_mov_b32 m0, 2")
    a(f"s_mov_b32 s75, {f32(CS)}"); a(f"s_mov_b32 s74, {f32(-CS)}")
    a("s_mov_b32 s72, 0"); a("s_mov_b32 s73, -1")
    a(f"s_mov_b32 s70, {spin*16}"); a("s_mov_b32 s45, 0"); a("s_mov_b32 s47, 0"); a("s_mov_b32 s48, 0"); a("s_mov_b32 s49, 0")
    selectors(28)
    attn_init(1)
    a("v_and_b32 v34, 15, v0"); a("v_lshrrev_b32 v35, 4, v0"); a("v_and_b32 v36, 1, v35"); a("v_lshrrev_b32 v37, 5, v0")
    a("v_lshlrev_b32 v38, 5, v34"); a("v_lshl_add_u32 v38, v36, 4, v38")
    a("v_lshl_add_u32 v32, v37, 9, v38")
    a("v_lshrrev_b32 v33, 1, v32")
    a(f"v_lshlrev_b32 v{vQ}, 4, v35")
    a("s_lshl_b32 s21, s3, 9"); a(f"s_add_u32 s21, s21, {L_REG}"); a(f"v_add_u32 v{vPO}, s21, v38")
    a(f"v_mul_u32_u24 v{vBO}, {RS}, v37"); a(f"v_add_u32 v{vBO}, v{vBO}, v{vPO}")
    a("s_lshl_b32 s21, s3, 2"); a(f"s_add_u32 s22, s21, {L_REG + R_M}"); a(f"v_mov_b32 v{vPM}, s22")
    a(f"s_add_u32 s22, s21, {L_RQ + 16*D}"); a(f"v_mov_b32 v{vRQ}, s22")
    a("v_lshrrev_b32 v34, 3, v34")
    a(f"v_lshl_add_u32 v{vQB}, v34, 8, v{vQ}")
    a(f"v_mul_u32_u24 v34, {RS}, v34")
    a(f"v_add_u32 v{vBM}, v34, v{vPM}")
    a("s_lshl_b32 s21, s3, 4"); a(f"s_add_u32 s21, s21, {L_REG + R_L}")
    a(f"v_lshlrev_b32 v{vPL}, 2, v35"); a(f"v_add_u32 v{vPL}, s21, v{vPL}")
    a(f"v_add_u32 v{vBL}, v34, v{vPL}")
    a(f"v_mov_b32 v{vFOUR}, 4"); a(f"v_mov_b32 v{vCNT}, {L_CTL}"); a(f"v_mov_b32 v{vZ}, 0")
    a("s_barrier")
    for w in range(4): a(f"ds_read_b128 v[{44+4*w}:{47+4*w}], v32 offset:{L_QP + 2048*w}")
    a("s_waitcnt lgkmcnt(0)")
    for i in range(4):
        a(f"v_add_f32 v{44+i}, v{44+i}, v{48+i}"); a(f"v_add_f32 v{52+i}, v{52+i}, v{56+i}")
    for i in range(4): a(f"v_add_f32 v{44+i}, v{44+i}, v{52+i}")
    a("v_cvt_pk_bf16_f32 v48, v44, v45"); a("v_cvt_pk_bf16_f32 v49, v46, v47")
    a(f"ds_write_b64 v33, v[48:49] offset:{L_QBF}")
    for i in range(4): a(f"ds_read_b128 v[{12+4*i}:{15+4*i}], v{vQ} offset:{L_QBF + 64*i}")
    a("s_waitcnt lgkmcnt(0)")
    stamp(1)
    for d in range(D): tile(1, d)
    a("s_branch L_A0")
    for d in range(D): tile(2, d)
    a("s_branch L_B0")
    for d in range(D):
        a.label(f"L_PHS{d}")
        a(f"s_mov_b32 s44, {d}"); a(f"s_mov_b32 s46, s{40+d}")
        if d < D - 1: a("s_branch L_PH")
    a.label("L_PH")
    O, M, L = R["O"], R["M"], R["L"]
    a(f"v_mov_b32 v{vD}, s47")
    if stamps: a("s_add_u32 s49, s49, s47")
    a("s_bitcmp1_b32 s45, 6")
    a("s_cbranch_scc1 L_PHB")
    a(f"ds_write_b32 v{vPL}, v{L[0]}")
    a(f"ds_write_b32 v{vPM}, v{M[0]}")
    a.nop(4)
    a(f"ds_write_b128 v{vPO}, v[{O[0]}:{O[0]+3}]")
    a(f"ds_add_u32 v{vCNT}, v{vD}")
    a("s_branch L_PHN")
    a.label("L_PHB")
    for t in range(2):
        a(f"ds_write_b32 v{vBL}, v{L[t]} offset:{(4+2*t)*RS}")
        a(f"ds_write_b32 v{vBM}, v{M[t]} offset:{(4+2*t)*RS}")
    a.nop(4)
    for t in range(2): a(f"ds_write_b128 v{vBO}, v[{O[t]}:{O[t]+3}] offset:{(4+2*t)*RS}")
    a(f"ds_add_u32 v{vZ}, v{vD} offset:{L_CTL + 16}")
    a.label("L_PHN")
    a("s_bitcmp1_b32 s46, 7")
    a("s_cbranch_scc1 L_FINI")
    if stamps:
        stamp("m0"); a("s_add_u32 m0, m0, 1")
    a("s_and_b32 s45, s46, 0xf0"); a("s_mov_b32 s47, 0")
    a("s_bitcmp1_b32 s46, 6")
    a("s_cbranch_scc1 L_PHQB")
    a("s_bfe_u32 s22, s46, 0x20004"); a("s_sub_u32 s23, s22, s48"); a("s_mov_b32 s48, s22")
    a("s_lshl_b32 s22, s23, 8"); a(f"v_add_u32 v{vQ}, s22, v{vQ}")
    for i in range(4): a(f"ds_read_b128 v[{12+4*i}:{15+4*i}], v{vQ} offset:{L_QBF + 64*i}")
    a(f"s_mul_i32 s22, s23, {RS}")
    for r in (vPO, vPM, vPL): a(f"v_add_u32 v{r}, s22, v{r}")
    a("s_lshl_b32 s22, s23, 2"); a(f"v_add_u32 v{vCNT}, s22, v{vCNT}")
    a("s_waitcnt lgkmcnt(0)")
    attn_init(1)
    for d in range(D - 1):
        a(f"s_cmp_eq_u32 s44, {d}"); a(f"s_cbranch_scc1 L_A{d}G")
    a(f"s_branch L_A{D-1}G")
    a.label("L_PHQB")
    for t in range(2):
        for i in range(4): a(f"ds_read_b128 v[{R['Q'][t]+4*i}:{R['Q'][t]+3+4*i}], v{vQB} offset:{L_QBB + 512*t + 64*i}")
    a("s_waitcnt lgkmcnt(0)")
    attn_init(2)
    for d in range(D - 1):
        a(f"s_cmp_eq_u32 s44, {d}"); a(f"s_cbranch_scc1 L_B{d}G")
    a(f"s_branch L_B{D-1}G")
    a.label("L_FINI")
    a(f"ds_add_u32 v{vZ}, v{vFOUR} offset:{L_FIN}")
    a("s_waitcnt lgkmcnt(0)")
    stamp(8)
    if stamps:
        a(f"v_readlane_b32 s97, v{VST}, 0"); a("s_mul_i32 s96, s49, 100"); a("s_add_u32 s96, s96, s97"); a(f"v_writelane_b32 v{VST}, s96, 15")
    stamp_flush(44)
    a("s_endpgm")
    emit_slow()

    a.label("L_AUX")
    if prio: a(f"s_setprio {prio}")
    X, WQ, DBG, WQB = 8, 12, 28, 32
    AW = 56
    a("s_waitcnt lgkmcnt(0)")
    for srd, off in ((X, 0), (WQ, 24), (WS, 104), (DBG, 96), (WQB, 64)):
        a(f"s_load_dwordx2 s[{srd}:{srd+1}], s[0:1], {off}")
    for srd, n in ((X, 4096), (WQ, 0x400000), (WS, 0x40000000), (DBG, 256), (WQB, 0x400000)):
        a(f"s_mov_b32 s{srd+2}, {hex(n)}"); a(f"s_mov_b32 s{srd+3}, 0x20000")
    a(f"s_sub_u32 s{AW}, s3, 4")
    a("v_and_b32 v1, 15, v0"); a("v_lshrrev_b32 v2, 4, v0")
    a("v_lshlrev_b32 v60, 4, v1"); a("v_lshl_add_u32 v60, v2, 18, v60")
    a("v_lshrrev_b32 v61, 3, v1"); a("v_lshlrev_b32 v61, 10, v61"); a("v_lshl_add_u32 v61, v2, 6, v61")
    a(f"s_lshl_b32 s57, s{AW}, 20"); a("s_lshl_b32 s58, s6, 8"); a("s_add_u32 s57, s57, s58")
    a(f"s_lshl_b32 s58, s{AW}, 8")
    W = 64
    a("s_waitcnt lgkmcnt(0)")
    stamp_init(); stamp(6)
    for i in range(4): a(f"buffer_load_dwordx4 v[{12+4*i}:{15+4*i}], v61, s[{X}:{X+3}], s58 offen offset:{16*i}")
    for j in range(32):
        a(f"buffer_load_dwordx4 v[{W+4*j}:{W+4*j+3}], v60, s[{WQ}:{WQ+3}], s57 offen {ntw}")
        if j < 31: a("s_add_u32 s57, s57, 0x2000")
    for i in range(4): a(f"buffer_load_dwordx4 v[{28+4*i}:{31+4*i}], v61, s[{X}:{X+3}], s58 offen offset:{2048+16*i}")
    if wqfirst: a("s_barrier")
    stamp(0)
    a(f"s_mov_b32 s75, {f32(CS)}")
    selectors(44)
    a("s_and_b32 s59, s4, 6"); a("s_add_u32 s59, s59, s5"); a("s_and_b32 s59, s59, 31")
    for i in range(4): a(f"v_mov_b32 v{44+i}, 0")
    a("v_lshlrev_b32 v48, 4, v0")
    a(f"s_cmp_eq_u32 s{AW}, 2")
    a("s_cbranch_scc1 L_NEUT")
    a(f"s_cmp_lg_u32 s{AW}, 3")
    a("s_cbranch_scc1 L_NORQ")
    for i in range(5): a(f"ds_write_b128 v48, v[44:47] offset:{L_RQ + 1024*i}")
    a(f"v_lshlrev_b32 v44, 26, v2"); a("v_lshl_add_u32 v44, v1, 14, v44")
    a("v_lshl_add_u32 v44, v2, 4, v44"); a(f"v_or_b32 v44, {F_VALID}, v44")
    a("s_lshl_b32 s60, s6, 21"); a(f"s_mul_i32 s61, s7, {SA*0x4000}"); a("s_add_u32 s60, s60, s61")
    a("v_mov_b32 v45, s20"); a("v_mov_b32 v46, s60"); a("v_cmp_eq_u32 vcc, 3, v2"); a("v_cndmask_b32 v45, v45, v46, vcc")
    a("v_add_u32 v44, v44, v45")
    for i in range(1, 4): a(f"v_add_u32 v{44+i}, {0x1000*i}, v44")
    a("v_lshrrev_b32 v49, 5, v0"); a("v_lshl_add_u32 v50, v49, 6, v48")
    a(f"v_mov_b32 v49, {L_RQ + 16*(D+1)}")
    a(f"s_mov_b32 exec_hi, {hex((1 << (16+SA)) - 1)}")
    a(f"ds_write_b128 v50, v[44:47] offset:{L_RQ}")
    a("s_mov_b64 exec, 1")
    a(f"ds_write_b32 v48, v49 offset:{L_TC}")
    a("s_mov_b64 exec, -1")
    a("s_branch L_NORQ")
    a.label("L_NEUT")
    for i in range((LDS_BYTES - L_REG) // 1024): a(f"ds_write_b128 v48, v[44:47] offset:{L_REG + 1024*i}")
    a("v_bfe_u32 v49, v0, 2, 3"); a(f"v_mul_u32_u24 v49, {RS}, v49"); a("v_and_b32 v50, 3, v0"); a("v_lshl_add_u32 v49, v50, 2, v49")
    a(f"v_mov_b32 v44, {f32(-3.0e38)}")
    a(f"ds_write_b32 v49, v44 offset:{L_REG + R_M}")
    a.label("L_NORQ")
    a("v_and_b32 v62, 1, v2"); a("v_lshlrev_b32 v62, 4, v62"); a("v_lshl_add_u32 v62, v1, 5, v62")
    a("v_lshrrev_b32 v63, 5, v0"); a("v_lshl_add_u32 v62, v63, 9, v62")
    a(f"s_lshl_b32 s60, s{AW}, 11"); a("v_add_u32 v63, s60, v62")
    ACQ = 192
    def wq_chain(t):
        for j in range(32):
            ao = 44 + 4*(j & 3)
            if j == 0: a(f"s_waitcnt vmcnt({36 if t == 0 else 0})")
            diag(ao, 12 + 16*t + (j >> 1), j & 1)
            if t == 0: a(f"s_waitcnt vmcnt({35-j})")
            mfma(ACQ + 4*t, ao, W + 4*j, None if j == 0 else ACQ + 4*t)
        a(f"ds_write_b128 v63, v[{ACQ+4*t}:{ACQ+4*t+3}] offset:{L_QP + 1024*t}")
    if dbgq:
        stamp(7); a("s_waitcnt vmcnt(35)"); stamp(8); a("s_waitcnt vmcnt(20)"); stamp(13); a("s_waitcnt vmcnt(4)"); stamp(14)
    wq_chain(0)
    stamp(15)
    a("s_waitcnt lgkmcnt(0)")
    a("s_barrier")
    stamp(1)
    wq_chain(1)
    a("v_mov_b32 v60, 1"); a("v_mov_b32 v61, 0")
    a(f"ds_add_u32 v61, v60 offset:{L_SYNC}")

    def lds_wait(off, target, sl=4):
        l, ld = a.newlabel("LW"), a.newlabel("LWD")
        a(f"s_mov_b32 s70, {spin*16}")
        a.label(l)
        if isinstance(off, int): a(f"ds_read_b32 v59, v61 offset:{off}")
        else: a(f"ds_read_b32 v59, {off}")
        a("s_waitcnt lgkmcnt(0)")
        a("v_readfirstlane_b32 s71, v59")
        a(f"s_cmp_ge_u32 s71, {target}")
        a(f"s_cbranch_scc1 {ld}")
        a(f"s_sleep {sl}")
        a("s_sub_u32 s70, s70, 1"); a("s_cmp_lg_u32 s70, 0")
        a(f"s_cbranch_scc1 {l}")
        a.label(ld)
    def gpoll(srd, soff, target):
        l, ld = a.newlabel("GP"), a.newlabel("GPD")
        a(f"s_mov_b32 s70, {spin}")
        a.label(l)
        a("s_mov_b64 exec, 1")
        a(f"buffer_load_dword v59, off, s[{srd}:{srd+3}], {soff} sc0 sc1")
        a("s_mov_b64 exec, -1")
        a("s_waitcnt vmcnt(0)")
        a("v_readfirstlane_b32 s71, v59")
        a(f"s_cmp_ge_u32 s71, {target}")
        a(f"s_cbranch_scc1 {ld}")
        for _ in range((psleep + 126) // 127): a(f"s_sleep {min(psleep, 127)}")
        a("s_sub_u32 s70, s70, 1"); a("s_cmp_lg_u32 s70, 0")
        a(f"s_cbranch_scc1 {l}")
        a.label(ld)
    def merge(ro, flag):
        a(f"ds_read_b128 v[32:35], v61 offset:{ro + R_M}")
        for w in range(4): a(f"ds_read_b128 v[{12+4*w}:{15+4*w}], v61 offset:{ro + R_L + 16*w}")
        for w in range(4): a(f"ds_read_b128 v[{44+4*w}:{47+4*w}], v36 offset:{ro + 512*w}")
        a("s_waitcnt lgkmcnt(8)")
        a("v_max3_f32 v28, v32, v33, v34"); a("v_max_f32 v28, v28, v35")
        for w in range(4): a(f"v_sub_f32 v{32+w}, v{32+w}, v28")
        for w in range(4): a(f"v_mul_f32 v{32+w}, s75, v{32+w}")
        for w in range(4): a(f"v_exp_f32 v{32+w}, v{32+w}")
        a("s_waitcnt lgkmcnt(4)")
        for w in range(4):
            r = 12 + 4*w
            a(f"v_add_f32 v{r}, v{r}, v{r+1}"); a(f"v_add_f32 v{r+2}, v{r+2}, v{r+3}"); a(f"v_add_f32 v{r}, v{r}, v{r+2}")
        a("v_mul_f32 v29, v12, v32")
        for w in range(1, 4): a(f"v_fmac_f32 v29, v{12+4*w}, v{32+w}")
        a("v_rcp_f32 v30, v29"); a("v_log_f32 v31, v29")
        a("s_waitcnt lgkmcnt(0)")
        for e in range(4): a(f"v_mul_f32 v{12+e}, v{44+e}, v32")
        for w in range(1, 4):
            for e in range(4): a(f"v_fmac_f32 v{12+e}, v{44+4*w+e}, v{32+w}")
        a("v_fmac_f32 v31, s75, v28")
        for e in range(4): a(f"v_mul_f32 v{12+e}, v{12+e}, v30")
        a("s_mov_b32 exec_lo, 0")
        for e in range(4): a(f"v_mov_b32 v{12+e}, v31")
        a("s_mov_b32 exec_lo, -1"); a("s_mov_b32 exec_hi, 0xff")
        a(f"buffer_store_dwordx4 v[12:15], v40, s[{WS}:{WS+3}], s64 offen {flag}")
        a("s_mov_b32 exec_hi, -1")

    a("v_lshlrev_b32 v40, 4, v0"); a("v_and_b32 v36, 0x1f0, v40")
    a(f"s_cmp_eq_u32 s{AW}, 1"); a("s_cbranch_scc1 L_S1")
    a(f"s_cmp_eq_u32 s{AW}, 2"); a("s_cbranch_scc1 L_QF")
    a(f"s_cmp_eq_u32 s{AW}, 3"); a("s_cbranch_scc1 L_DISP")
    for i in range(4): a(f"v_mov_b32 v{44+i}, -1")
    a("s_lshl_b32 s60, s2, 11"); a(f"s_add_u32 s60, s60, {YY}")
    for i in range(2): a(f"buffer_store_dwordx4 v[44:47], v40, s[{WS}:{WS+3}], s60 offen offset:{1024*i} {clrf}")
    a("s_lshl_b32 s64, s6, 3"); a("s_add_u32 s64, s64, s7"); a("s_lshl_b32 s64, s64, 10")
    if REC: a(f"s_add_u32 s64, s64, {REC}")
    for b in range(4):
        if b < 3: lds_wait(L_CTL + 4*b, 0x1000, 16)
        else:
            lds_wait(L_TC, 16*(52 + SA), 16)
            stamp(11)
            lds_wait(L_FIN, 1024, fsl)
        stamp(2+b)
        merge(L_REG + b*RS, recf if b < 3 else recf3)
        if b < 3: a("s_add_u32 s64, s64, 0x40000")
    if stamps: a("s_waitcnt vmcnt(0)")
    stamp(12)
    stamp_flush(44)
    a("s_endpgm")

    a.label("L_S1")
    RW = 192
    a("v_lshlrev_b32 v52, 4, v1"); a("v_lshl_add_u32 v52, v2, 17, v52")
    a("v_lshrrev_b32 v53, 3, v1"); a("v_lshlrev_b32 v53, 10, v53"); a("v_lshl_add_u32 v53, v2, 5, v53")
    a("s_lshl_b32 s60, s4, 19"); a("s_lshl_b32 s61, s5, 8"); a("s_add_u32 s60, s60, s61")
    a("s_lshl_b32 s61, s4, 7")
    a("s_waitcnt lgkmcnt(0)")
    for t in range(2):
        for i in range(2): a(f"buffer_load_dwordx4 v[{12+8*t+4*i}:{15+8*t+4*i}], v53, s[{X}:{X+3}], s61 offen offset:{2048*t+16*i}")
    for j in range(16):
        a(f"buffer_load_dwordx4 v[{RW+4*j}:{RW+4*j+3}], v52, s[{WQB}:{WQB+3}], s60 offen {s1nt}")
        if j < 15: a("s_add_u32 s60, s60, 0x2000")
    for j in range(16):
        if j == 0: a("s_waitcnt vmcnt(16)")
        for t in range(2): diag(64 + 8*(j & 1) + 4*t, 12 + 8*t + (j >> 1), j & 1)
        a(f"s_waitcnt vmcnt({15-j})")
        for t in range(2): mfma(44 + 4*t, 64 + 8*(j & 1) + 4*t, RW + 4*j, None if j == 0 else 44 + 4*t)
    a("v_lshrrev_b32 v53, 5, v0"); a("v_and_b32 v52, 0x1ff, v62"); a("v_lshl_add_u32 v52, v53, 17, v52")
    a("s_lshl_b32 s60, s2, 9"); a(f"s_add_u32 s60, s60, {QB}"); a("s_add_u32 s61, s60, 0x40000")
    for t in range(2): a(f"buffer_store_dwordx4 v[{44+4*t}:{47+4*t}], v52, s[{WS}:{WS+3}], s{60+t} offen sc1")
    if PA_N > 0:
        for i in range(4): a(f"v_mov_b32 v{12+i}, 0")
        a("s_lshl_b32 s60, s6, 8"); a(f"s_add_u32 s60, s60, {CTR}")
        a("s_cmp_eq_u32 s7, 0"); a("s_cselect_b32 exec_lo, 0xff, 0"); a("s_mov_b32 exec_hi, 0")
        a("s_cbranch_execz L_NOZ")
        a(f"buffer_store_dwordx4 v[12:15], v40, s[{WS}:{WS+3}], s60 offen sc1")
        a.label("L_NOZ")
        a("s_mov_b64 exec, -1")
    a("s_waitcnt vmcnt(0)")
    a("s_mov_b64 exec, 1")
    a(f"buffer_atomic_add v60, off, s[{DBG}:{DBG+3}], 0 sc1")
    a("s_mov_b64 exec, -1")
    stamp(2)
    a("s_lshl_b32 s64, s59, 5"); a("s_add_u32 s64, s64, s4"); a("s_lshl_b32 s64, s64, 10"); a(f"s_add_u32 s64, s64, {REC + 0x100000}")
    lds_wait(L_CTL + 16, 1024, 16)
    stamp(3)
    for hd in range(4):
        merge(L_REGB + hd*RS, recf)
        if hd < 3: a("s_add_u32 s64, s64, 0x2000")
    stamp(4)
    stamp_flush(44)
    a("s_endpgm")

    a.label("L_QF")
    lds_wait(L_SYNC, 256, 1)
    for w in range(4): a(f"ds_read_b128 v[{44+4*w}:{47+4*w}], v62 offset:{L_QP + 2048*w + 1024}")
    a("v_lshrrev_b32 v63, 1, v62")
    a("s_waitcnt lgkmcnt(0)")
    for i in range(4):
        a(f"v_add_f32 v{44+i}, v{44+i}, v{48+i}"); a(f"v_add_f32 v{52+i}, v{52+i}, v{56+i}")
    for i in range(4): a(f"v_add_f32 v{44+i}, v{44+i}, v{52+i}")
    a("v_cvt_pk_bf16_f32 v48, v44, v45"); a("v_cvt_pk_bf16_f32 v49, v46, v47")
    a(f"ds_write_b64 v63, v[48:49] offset:{L_QBF + 512}")
    lds_wait(L_TC, 16*CHK0, 16)
    gpoll(DBG, 0, 256)
    stamp(4)
    a("s_lshl_b32 s60, s59, 14"); a(f"s_add_u32 s60, s60, {QB}")
    for u in range(16):
        a(f"buffer_load_dwordx4 v[{192+4*u}:{195+4*u}], v40, s[{WS}:{WS+3}], s60 offen offset:{(u&3)*1024} sc1")
        if u & 3 == 3 and u < 15: a("s_add_u32 s60, s60, 0x1000")
    a("s_lshl_b32 s60, s59, 21"); a("s_lshl_b32 s61, s4, 16"); a("s_add_u32 s60, s60, s61"); a(f"s_add_u32 s60, s60, {0x180000 + (F_VALID|F_ISB)}")
    a("v_lshlrev_b32 v44, 12, v0"); a("v_add_u32 v44, s60, v44"); a("v_lshlrev_b32 v45, 2, v0")
    for hd in range(4):
        a(f"s_waitcnt vmcnt({12-4*hd})")
        r = 192 + 16*hd
        for e in range(4): a(f"v_add_f32 v{r+e}, v{r+e}, v{r+4+e}"); a(f"v_add_f32 v{r+8+e}, v{r+8+e}, v{r+12+e}")
        for e in range(4): a(f"v_add_f32 v{r+e}, v{r+e}, v{r+8+e}")
    for p in range(2):
        r0, r1 = 192 + 32*p, 192 + 32*p + 16
        for e in range(4): a(f"v_permlane32_swap_b32 v{r0+e}, v{r1+e}")
        for e in range(4): a(f"v_add_f32 v{r0+e}, v{r0+e}, v{r1+e}")
        a(f"v_cvt_pk_bf16_f32 v{48+2*p}, v{r0}, v{r0+1}"); a(f"v_cvt_pk_bf16_f32 v{49+2*p}, v{r0+2}, v{r0+3}")
    a("v_lshlrev_b32 v52, 3, v0")
    for p in range(2): a(f"ds_write_b64 v52, v[{48+2*p}:{49+2*p}] offset:{L_QBB + 512*p}")
    a("s_mov_b64 exec, 0xffff")
    a(f"ds_write_b32 v45, v44 offset:{L_RQ + 512}")
    a("s_mov_b64 exec, -1")
    a("s_waitcnt lgkmcnt(0)")
    stamp(5)
    stamp_flush(44)
    a("s_endpgm")

    a.label("L_DISP")
    a(f"s_mov_b32 s48, {L_RQ + 16*(52 + SA)}")
    if PA_N > 0:
        a("s_lshl_b32 s50, s6, 8"); a(f"s_add_u32 s50, s50, {CTR}")
        a(f"s_mov_b32 s51, {PA_N}")
        a("s_lshl_b32 s52, s6, 21"); a(f"s_add_u32 s52, s52, {0xc000000 + 8*SA*0x4000 + (F_VALID | 0x30)}")
        a(f"s_sub_u32 s49, s48, {16*LEAD}")
        lds_wait(L_TC, 16*(52 + SA - LEAD - 1), 32)
        stamp(9)
        a("v_lshlrev_b32 v46, 12, v0"); a("v_lshlrev_b32 v47, 2, v0")
        a("s_mov_b32 s53, 0")
        a(f"s_mov_b32 s70, {spin*16}")
        a.label("L_DA")
        for k in range(PD):
            lw = a.newlabel("DW")
            a.label(lw)
            a(f"ds_read_b32 v44, v61 offset:{L_TC}")
            a("s_waitcnt lgkmcnt(0)")
            a("v_readfirstlane_b32 s71, v44")
            a("s_cmp_ge_u32 s71, s49")
            lg = a.newlabel("DG")
            a(f"s_cbranch_scc1 {lg}")
            a("s_sleep 2")
            a("s_sub_u32 s70, s70, 1")
            a(f"s_cbranch_scc0 {lw}")
            a(f"s_branch L_DXA")
            a.label(lg)
            a("s_mov_b64 exec, 1")
            a(f"v_mov_b32 v{48+k}, 1")
            a(f"buffer_atomic_add v{48+k}, off, s[{WS}:{WS+3}], s50 sc0 sc1")
            a("s_mov_b64 exec, -1")
            a("s_add_u32 s49, s49, 16")
            a("s_add_u32 s53, s53, 1")
            ln = a.newlabel("DN")
            a(f"s_cmp_lt_u32 s53, {PD}")
            a(f"s_cbranch_scc1 {ln}")
            a(f"s_waitcnt vmcnt({PD-1})")
            a(f"v_readfirstlane_b32 s71, v{48 + (k+1) % PD}")
            a("s_cmp_ge_u32 s71, s51")
            a(f"s_cbranch_scc1 L_DXA")
            a("s_lshl_b32 s71, s71, 14"); a("s_add_u32 s71, s71, s52")
            a("v_add_u32 v44, s71, v46"); a("v_add_u32 v45, s48, v47")
            a("s_mov_b64 exec, 15")
            a("ds_write_b32 v45, v44")
            a("s_mov_b64 exec, -1")
            a("s_add_u32 s48, s48, 16")
            a.label(ln)
        a("s_branch L_DA")
        a.label("L_DXA")
    a("v_lshlrev_b32 v53, 2, v0"); a("v_add_u32 v53, s48, v53"); a(f"v_mov_b32 v52, {hex(ENDDESC)}")
    a("s_mov_b32 exec_hi, 0")
    a("ds_write_b32 v53, v52")
    a("s_mov_b32 exec_hi, -1")
    a("s_waitcnt vmcnt(0) lgkmcnt(0)")
    stamp(10)
    stamp_flush(44)
    a.label("L_END")
    a("s_endpgm")
    assert a.maxv <= 256 and a.maxs <= 102, (a.maxv, a.maxs)

    a.hist = []
    a.raw(".globl gm_fin_kernel")
    a.raw(".p2align 8")
    a.raw(".type gm_fin_kernel,@function")
    a.raw("gm_fin_kernel:")
    WO, X, GW, OUT = 8, 12, 16, 20
    a("s_cmp_ge_u32 s2, 256")
    a("s_cbranch_scc1 F_END")
    a("s_bfe_u32 s5, s2, 0x20003"); a("s_lshr_b32 s4, s2, 5"); a("s_lshl_b32 s4, s4, 3"); a("s_and_b32 s6, s2, 7"); a("s_add_u32 s4, s4, s6")
    a("s_load_dwordx2 s[28:29], s[0:1], 32"); a("s_load_dwordx2 s[30:31], s[0:1], 72")
    a(f"s_load_dwordx2 s[{WS}:{WS+1}], s[0:1], 104")
    a(f"s_load_dwordx2 s[{X}:{X+1}], s[0:1], 0")
    a(f"s_load_dwordx4 s[32:35], s[0:1], 80")
    a("v_lshrrev_b32 v1, 6, v0"); a("v_and_b32 v0, 63, v0")
    a("v_readfirstlane_b32 s3, v1")
    stamp_init(); stamp(0)
    for srd, n in ((X, 4096), (WO, 0x400000), (WS, 0x40000000), (GW, 1024), (OUT, 4096)):
        a(f"s_mov_b32 s{srd+2}, {hex(n)}"); a(f"s_mov_b32 s{srd+3}, 0x20000")
    a("v_and_b32 v1, 15, v0"); a("v_lshrrev_b32 v2, 4, v0")
    a("v_lshlrev_b32 v52, 4, v1"); a("v_lshl_add_u32 v52, v2, 13, v52")
    a("s_and_b32 s6, s4, 31"); a("s_lshl_b32 s60, s6, 17"); a("s_lshl_b32 s61, s3, 15"); a("s_add_u32 s60, s60, s61")
    a("s_lshl_b32 s61, s5, 8"); a("s_add_u32 s60, s60, s61"); a("s_add_u32 s61, s60, 0x1000")
    a("v_lshrrev_b32 v53, 3, v1"); a("v_lshlrev_b32 v53, 18, v53"); a("v_and_b32 v54, 7, v1"); a("v_lshl_add_u32 v53, v54, 10, v53")
    a("v_lshl_add_u32 v54, v2, 5, v53")
    a("s_lshr_b32 s7, s4, 5"); a("s_lshl_b32 s62, s7, 20"); a("s_lshl_b32 s63, s6, 13"); a("s_add_u32 s62, s62, s63")
    if REC: a(f"s_add_u32 s62, s62, {REC}")
    a("s_add_u32 s63, s62, 0x80000")
    a("s_lshl_b32 s66, s3, 7"); a("s_add_u32 s64, s62, s66"); a("s_add_u32 s65, s63, s66")
    a("v_lshlrev_b32 v40, 4, v0")
    a("s_lshr_b32 s66, s4, 4"); a("s_lshl_b32 s66, s66, 10")
    a("s_cmp_eq_u32 s7, 0")
    a("s_waitcnt lgkmcnt(0)")
    a(f"s_cselect_b64 s[{WO}:{WO+1}], s[28:29], s[30:31]")
    a(f"s_mov_b64 s[{GW}:{GW+1}], s[32:33]"); a(f"s_mov_b64 s[{OUT}:{OUT+1}], s[34:35]")
    RW = 64
    for t in range(2):
        a(f"buffer_load_dword v{56+t}, v53, s[{WS}:{WS+3}], s{62+t} offen offset:512")
        for u in range(2): a(f"buffer_load_dwordx4 v[{12+8*t+4*u}:{15+8*t+4*u}], v54, s[{WS}:{WS+3}], s{64+t} offen offset:{16*u}")
    for j in range(8): a(f"buffer_load_dwordx4 v[{RW+4*j}:{RW+4*j+3}], v52, s[{WO}:{WO+3}], s{60+(j>>2)} offen offset:{1024*(j&3)} {wont}")
    a(f"buffer_load_dwordx4 v[96:99], v40, s[{X}:{X+3}], s66 offen")
    a(f"buffer_load_dwordx4 v[100:103], v40, s[{GW}:{GW+3}], 0 offen")
    selectors(44)
    a("v_and_b32 v62, 1, v2"); a("v_lshlrev_b32 v62, 4, v62"); a("v_lshl_add_u32 v62, v1, 5, v62")
    a("v_lshrrev_b32 v63, 5, v0"); a("v_lshl_add_u32 v62, v63, 9, v62")
    a("s_lshl_b32 s60, s3, 11"); a("v_add_u32 v62, s60, v62")
    a("v_lshlrev_b32 v63, 3, v0"); a("s_lshl_b32 s60, s3, 9"); a("v_add_u32 v63, s60, v63")
    a("v_lshlrev_b32 v41, 3, v1"); a("v_lshl_add_u32 v41, v2, 13, v41")
    a("s_lshl_b32 s60, s3, 17"); a("s_lshl_b32 s61, s5, 15"); a("s_add_u32 s60, s60, s61"); a("s_lshl_b32 s61, s4, 7"); a("s_add_u32 s60, s60, s61"); a(f"s_add_u32 s67, s60, {YY}")
    DP8 = ("quad_perm:[1,0,3,2]", "quad_perm:[2,3,0,1]", "row_half_mirror")
    for t in range(2):
        O = 12 + 8*t
        a(f"s_waitcnt vmcnt({15 - 3*t})")
        a(f"v_mov_b32 v58, v{56+t}")
        for dp in DP8: a(f"v_max_f32_dpp v58, v58, v58 {dp} {DP}")
        a(f"v_sub_f32 v58, v{56+t}, v58"); a("v_exp_f32 v58, v58")
        a("v_mov_b32 v59, v58")
        for dp in DP8: a(f"v_add_f32_dpp v59, v59, v59 {dp} {DP}")
        a("v_rcp_f32 v59, v59"); a("v_mul_f32 v58, v58, v59")
        a(f"s_waitcnt vmcnt({13 - 3*t})")
        for i in range(8): a(f"v_mul_f32 v{O+i}, v{O+i}, v58")
        for dp in DP8:
            for i in range(8): a(f"v_add_f32_dpp v{O+i}, v{O+i}, v{O+i} {dp} {DP}")
        for i in range(4): a(f"v_cvt_pk_bf16_f32 v{O+i}, v{O+2*i}, v{O+2*i+1}")
    stamp(1)
    for j in range(8):
        for t in range(2): diag(44 + 8*(j & 1) + 4*t, 12 + 8*t + (j >> 1), j & 1)
        a(f"s_waitcnt vmcnt({9-j})")
        for t in range(2): mfma(28 + 4*t, 44 + 8*(j & 1) + 4*t, RW + 4*j, None if j == 0 else 28 + 4*t)
    for t in range(2): a(f"ds_write_b128 v62, v[{28+4*t}:{31+4*t}] offset:{1024*t}")
    a("s_waitcnt vmcnt(0) lgkmcnt(0)")
    stamp(2)
    a("s_barrier")
    for w in range(4): a(f"ds_read_b64 v[{12+2*w}:{13+2*w}], v63 offset:{2048*w}")
    a("s_waitcnt lgkmcnt(0)")
    for e in range(2): a(f"v_add_f32 v{12+e}, v{12+e}, v{14+e}"); a(f"v_add_f32 v{16+e}, v{16+e}, v{18+e}")
    for e in range(2): a(f"v_add_f32 v{12+e}, v{12+e}, v{16+e}")
    a(f"buffer_store_dwordx2 v[12:13], v41, s[{WS}:{WS+3}], s67 offen sc1")
    stamp(3)
    a("s_or_b32 s60, s3, s5")
    a("s_cmp_lg_u32 s60, 0")
    a("s_cbranch_scc1 F_FLUSH")
    a("s_lshl_b32 s66, s4, 13"); a(f"s_add_u32 s66, s66, {YY}"); a("s_add_u32 s67, s66, 0x1000")
    a(f"s_mov_b32 s70, {spin}")
    def ypoll():
        for i in range(8): a(f"buffer_load_dwordx4 v[{64+4*i}:{67+4*i}], v40, s[{WS}:{WS+3}], s{66 + (i>>2)} offen offset:{1024*(i&3)} sc1")
    ypoll()
    for i in range(4):
        a(f"v_lshlrev_b32 v20, 16, v{96+i}"); a(f"v_and_b32 v21, 0xffff0000, v{96+i}")
        a(f"v_lshlrev_b32 v22, 16, v{100+i}"); a(f"v_and_b32 v23, 0xffff0000, v{100+i}")
        a("v_mul_f32 v20, v20, v22"); a("v_mul_f32 v21, v21, v23")
        a("v_cvt_pk_bf16_f32 v20, v20, v21")
        a("v_lshlrev_b32 v21, 16, v20"); a("v_and_b32 v20, 0xffff0000, v20")
        if i == 0: a("v_add_f32 v24, v20, v21")
        else: a("v_add_f32 v24, v24, v20"); a("v_add_f32 v24, v24, v21")
    for r in (1, 2, 4, 8): a(f"v_add_f32_dpp v24, v24, v24 row_ror:{r} {DP}")
    a("v_mov_b32 v25, v24"); a("v_permlane16_swap_b32 v24, v25"); a("v_add_f32 v24, v24, v25")
    a("v_mov_b32 v25, v24"); a("v_permlane32_swap_b32 v24, v25"); a("v_add_f32 v24, v24, v25")
    a("v_cvt_pk_bf16_f32 v24, v24, v24"); a("v_and_b32 v24, 0xffff0000, v24")
    a(f"v_mul_f32 v24, {f32(-LOG2E)}, v24"); a("v_exp_f32 v24, v24"); a("v_add_f32 v24, 1.0, v24"); a("v_rcp_f32 v24, v24")
    a("v_cvt_pk_bf16_f32 v24, v24, v24"); a("v_and_b32 v62, 0xffff0000, v24")
    a("v_sub_f32 v24, 1.0, v62"); a("v_cvt_pk_bf16_f32 v24, v24, v24"); a("v_and_b32 v63, 0xffff0000, v24")
    a("s_mov_b32 exec_lo, 0"); a("v_mov_b32 v62, v63"); a("s_mov_b32 exec_lo, -1")
    a("v_lshlrev_b32 v41, 3, v0"); a("s_lshl_b32 s63, s4, 6")
    a("s_branch F_CHK")
    a.label("F_POLL")
    ypoll()
    a.label("F_CHK")
    for i in range(8):
        a(f"s_waitcnt vmcnt({7-i})")
        r = 64 + 4*i
        if i == 0: a(f"v_max3_u32 v12, v{r}, v{r+1}, v{r+2}"); a(f"v_max_u32 v12, v12, v{r+3}")
        else: a(f"v_max3_u32 v12, v12, v{r}, v{r+1}"); a(f"v_max3_u32 v12, v12, v{r+2}, v{r+3}")
    a("v_cmp_eq_u32 vcc, -1, v12")
    a("s_cbranch_vccz F_DONE")
    a("s_mov_b64 exec, vcc")
    a("s_sub_u32 s70, s70, 1"); a("s_cmp_lg_u32 s70, 0")
    a("s_cbranch_scc1 F_POLL")
    a.label("F_DONE")
    a("s_mov_b64 exec, -1")
    stamp(4)
    for p in range(2):
        r = 64 + 16*p
        for e in range(4): a(f"v_add_f32 v{r+e}, v{r+e}, v{r+4+e}"); a(f"v_add_f32 v{r+8+e}, v{r+8+e}, v{r+12+e}")
        for e in range(4): a(f"v_add_f32 v{r+e}, v{r+e}, v{r+8+e}")
    for e in range(4): a(f"v_permlane32_swap_b32 v{64+e}, v{80+e}")
    for e in range(4): a(f"v_add_f32 v{64+e}, v{64+e}, v{80+e}")
    for e in range(4): a(f"v_mov_b32 v{68+e}, v{64+e}")
    for e in range(4): a(f"v_permlane16_swap_b32 v{64+e}, v{68+e}")
    for e in range(4): a(f"v_add_f32 v{64+e}, v{64+e}, v{68+e}")
    for e in range(4): a(f"v_add_f32_dpp v{64+e}, v{64+e}, v{64+e} row_ror:8 {DP}")
    def rnd(r0):
        a(f"v_cvt_pk_bf16_f32 v68, v{r0}, v{r0+1}"); a(f"v_cvt_pk_bf16_f32 v69, v{r0+2}, v{r0+3}")
        a(f"v_lshlrev_b32 v{r0}, 16, v68"); a(f"v_and_b32 v{r0+1}, 0xffff0000, v68")
        a(f"v_lshlrev_b32 v{r0+2}, 16, v69"); a(f"v_and_b32 v{r0+3}, 0xffff0000, v69")
    rnd(64)
    for e in range(4): a(f"v_mul_f32 v{64+e}, v{64+e}, v62")
    rnd(64)
    for e in range(4): a(f"v_mov_b32 v{72+e}, v{64+e}")
    for e in range(4): a(f"v_permlane32_swap_b32 v{64+e}, v{72+e}")
    for e in range(4): a(f"v_add_f32 v{64+e}, v{64+e}, v{72+e}")
    a("v_cvt_pk_bf16_f32 v68, v64, v65"); a("v_cvt_pk_bf16_f32 v69, v66, v67")
    a("s_mov_b64 exec, 0xff")
    a(f"buffer_store_dwordx2 v[68:69], v41, s[{OUT}:{OUT+3}], s63 offen")
    stamp(5)
    a.label("F_FLUSH")
    stamp_flush(44, STAMP2)
    a.label("F_END")
    a("s_endpgm")

    kd(a, f"{KN}_kernel", 256)
    kd(a, "gm_fin_kernel", 104)
    return a.text()

if __name__ == "__main__":
    import argparse
    ap = argparse.ArgumentParser()
    ap.add_argument("out")
    ap.add_argument("opts", nargs="*")
    args = ap.parse_args()
    kw = {}
    for o in args.opts:
        k, v = o.split("=")
        try: v = eval(v)
        except Exception: pass
        kw[k] = v
    open(args.out, "w").write(gen(**kw))
```
